```python
import torch

def _softmax(x, axis=-1):
    return torch.softmax(x, dim=axis)
def _gelu(x):
    return torch.nn.functional.gelu(x, approximate="tanh")
def _silu(x):
    return torch.nn.functional.silu(x)
def _sigmoid(x):
    return torch.sigmoid(x)
def _layernorm(x, axis=-1, eps=1e-5):
    m = x.mean(dim=axis, keepdim=True)
    v = x.var(dim=axis, keepdim=True, unbiased=False)
    return (x - m) / torch.sqrt(v + eps)
def _scatter_add(tgt, idx, src, axis=0):
    return tgt.clone().index_add_(axis, idx, src)
def _segment_sum(src, seg, n):
    out = torch.zeros((n,) + src.shape[1:], dtype=src.dtype)
    return out.index_add_(0, seg, src)
def _pad(x, pw):
    flat = tuple(v for pair in reversed(pw) for v in pair)
    return torch.nn.functional.pad(x, flat)

kernel_name = 'sequential_preLN__grouped_kv_mqa__moe_arch_mod__prompt'

def setup_inputs():

    _w = (lambda a: (lambda t: t.to(torch.bfloat16) if t.is_floating_point() else t)(torch.as_tensor(a)))
    def _A_setup():
        B, S, D, H = 1, 2048, 576, 32
        Dh = D // H
        return {
            "x": _w((lambda *s: torch.randn(*s, dtype=torch.bfloat16) * 0.05)(B, S, D)),
            "wq": _w((lambda *s: torch.randn(*s, dtype=torch.bfloat16) * 0.05)(D, H * Dh)),
            "wk": _w((lambda *s: torch.randn(*s, dtype=torch.bfloat16) * 0.05)(D, Dh)),
            "wv": _w((lambda *s: torch.randn(*s, dtype=torch.bfloat16) * 0.05)(D, Dh)),
            "wo": _w((lambda *s: torch.randn(*s, dtype=torch.bfloat16) * 0.05)(H * Dh, D)),
        }
    _A_in = _A_setup()

    def _B_setup():
        B, S, D, F, C = 1, 2048, 576, 4608, 8
        return {
            "x": _w((lambda *s: torch.randn(*s, dtype=torch.bfloat16) * 0.05)(B, S, D)),
            "w_r": _w((lambda *s: torch.randn(*s, dtype=torch.bfloat16) * 0.05)(D)),
            "w_gate": _w((lambda *s: torch.randn(*s, dtype=torch.bfloat16) * 0.05)(D, F)),
            "w_up": _w((lambda *s: torch.randn(*s, dtype=torch.bfloat16) * 0.05)(D, F)),
            "w_down": _w((lambda *s: torch.randn(*s, dtype=torch.bfloat16) * 0.05)(F, D)),
        }
    _B_in = _B_setup()

    return {
        "A_x": _A_in["x"],
        "A_wq": _A_in["wq"],
        "A_wk": _A_in["wk"],
        "A_wv": _A_in["wv"],
        "A_wo": _A_in["wo"],
        "B_x": _B_in["x"],
        "B_w_r": _B_in["w_r"],
        "B_w_gate": _B_in["w_gate"],
        "B_w_up": _B_in["w_up"],
        "B_w_down": _B_in["w_down"],
    }

def reference(A_x, A_wq, A_wk, A_wv, A_wo, B_x, B_w_r, B_w_gate, B_w_up, B_w_down):
    def _A_ref(x, wq, wk, wv, wo):
        B, S, D = x.shape
        H = 32
        Dh = D // H
        q = (lambda x, *d: x.permute(*d))((x @ wq).reshape(B, S, H, Dh), 0, 2, 1, 3)
        k = x @ wk
        v = x @ wv
        scores = torch.einsum("bhqd,bkd->bhqk", q, k) * (Dh ** -0.5)
        p = _softmax(scores, axis=-1)
        o = torch.einsum("bhqk,bkd->bhqd", p, v)
        return (lambda x, *d: x.permute(*d))(o, 0, 2, 1, 3).reshape(B, S, H * Dh) @ wo

    def _B_ref(x, w_r, w_gate, w_up, w_down):
        B, S, D = x.shape
        C = 8
        r = x @ w_r
        idx = torch.argsort(-r, axis=-1)[:, :C]
        idx_e = (lambda x, n, axis: torch.repeat_interleave(x, n, dim=axis))(idx.reshape(B, C, 1), D, axis=2)
        x_sel = (lambda x, i, axis: torch.take_along_dim(x, i, dim=axis))(x, idx_e, axis=1)
        g = _silu(x_sel @ w_gate)
        u = x_sel @ w_up
        y = (g * u) @ w_down
        r_sel = _sigmoid((lambda x, i, axis: torch.take_along_dim(x, i, dim=axis))(r, idx, axis=1))
        y = y * r_sel.reshape(B, C, 1)
        b_off = (torch.arange(B) * S).reshape(B, 1)
        flat_idx = (idx + b_off).reshape(B * C)
        zero = (x * 0.0).reshape(B * S, D)
        upd = _scatter_add(zero, flat_idx, y.reshape(B * C, D), axis=0)
        return x + upd.reshape(B, S, D)

    x = A_x
    h = x + _A_ref(_layernorm(x, axis=-1), A_wq, A_wk, A_wv, A_wo)
    h2 = h + _B_ref(_layernorm(h, axis=-1), B_w_r, B_w_gate, B_w_up, B_w_down)
    return h2
```

```python
import struct


def f32bits(x):
    return struct.unpack("<I", struct.pack("<f", x))[0]


def vr(a, n=1, p="v"):
    return f"{p}{a}" if n == 1 else f"{p}[{a}:{a+n-1}]"


def ar(a, n=1):
    return vr(a, n, "a")


def sr(a, n=1):
    return vr(a, n, "s")


class Emit:
    def __init__(self):
        self.lines = []
        self.vm_n = 0
        self.ds_n = 0
        self.vm_done = 0
        self.ds_done = 0

    def __call__(self, s):
        for l in s.strip("\n").split("\n"):
            l = l.strip()
            if not l:
                continue
            if l.endswith(":") or l.startswith("."):
                self.lines.append(l)
            else:
                self.lines.append("    " + l)

    def label(self, name):
        self.lines.append(name + ":")

    def comment(self, s):
        self.lines.append("    ; " + s)

    def vm(self, s):
        self(s)
        self.vm_n += 1
        assert self.vm_n - self.vm_done <= 63 + 64, "vm bookkeeping"
        return self.vm_n

    def ds(self, s):
        self(s)
        self.ds_n += 1
        return self.ds_n

    def wait_str(self, vm=None, ds=None):
        parts = []
        if vm is not None and vm > self.vm_done:
            n = self.vm_n - vm
            assert n >= 0
            if n <= 63:
                parts.append(f"vmcnt({n})")
                self.vm_done = vm
            else:
                parts.append("vmcnt(63)")
                self.vm_done = max(self.vm_done, self.vm_n - 63)
        if ds is not None and ds > self.ds_done:
            n = self.ds_n - ds
            assert n >= 0
            n = min(n, 15)
            parts.append(f"lgkmcnt({n})")
            self.ds_done = self.ds_n - n
        return ("s_waitcnt " + " ".join(parts)) if parts else None

    def wait(self, vm=None, ds=None):
        s = self.wait_str(vm, ds)
        if s:
            self(s)
        return s is not None

    def wait_all(self):
        self("s_waitcnt vmcnt(0) lgkmcnt(0)")
        self.vm_done = self.vm_n
        self.ds_done = self.ds_n

    def fork(self):
        return (self.vm_n, self.ds_n, self.vm_done, self.ds_done)

    def restore(self, st):
        self.vm_n, self.ds_n, self.vm_done, self.ds_done = st

    def nop(self, n):
        while n > 0:
            k = min(n, 16)
            self(f"s_nop {k-1}")
            n -= k

    def srd(self, d, base, size):
        self(f"s_mov_b32 s{d}, s{base}")
        self(f"s_mov_b32 s{d+1}, s{base+1}")
        self(f"s_mov_b32 s{d+2}, {size}")
        self(f"s_mov_b32 s{d+3}, 0x20000")

    def text(self):
        return "\n".join(self.lines) + "\n"


def descriptor(name, vgpr, accum, sgpr=96):
    return f""".amdhsa_kernel {name}
  .amdhsa_next_free_vgpr {vgpr}
  .amdhsa_next_free_sgpr {sgpr}
  .amdhsa_accum_offset {accum}
  .amdhsa_group_segment_fixed_size 0
  .amdhsa_kernarg_size 104
  .amdhsa_user_sgpr_count 2
  .amdhsa_user_sgpr_kernarg_segment_ptr 1
  .amdhsa_system_sgpr_workgroup_id_x 1
.end_amdhsa_kernel
"""


def kernel_head(name):
    return f""".globl {name}
.p2align 8
.type {name},@function
{name}:
"""
```

```python
from asmlib import *
from layout import *

NAME = "prep_kernel"
LDS = 110592

V_L, V_C, V_G = 0, 2, 3
V_XOFF = 4
V_T = 5
V_ONES = 12
V_SUM = 16
V_GRAM = 20
V_P = 24
V_N = 26
V_WOFF = 34
V_RD = 38
V_ST = 40
V_X = 44
V_W = 116
V_ACC = 164
V_PF = 188
V_WO = 190
NV = 216


def code_prefetch(e, end_label, vtmp, vdst, tag):
    e(f"s_getpc_b64 s[40:41]")
    e.label(f"L_{tag}_pc")
    e(f"v_lshlrev_b32 v{vtmp}, 7, v0")
    e(f"v_min_u32 v{vtmp}, {end_label}-L_{tag}_pc-4, v{vtmp}")
    return e.vm(f"global_load_dword v{vdst}, v{vtmp}, s[40:41]")


def stats(e, xtok, scale):
    for s in range(18):
        e.wait(vm=xtok[s])
        x = vr(V_X + 4 * s, 4)
        c0 = "0" if s == 0 else vr(V_SUM, 4)
        c1 = "0" if s == 0 else vr(V_GRAM, 4)
        e(f"v_mfma_f32_16x16x32_bf16 {vr(V_SUM,4)}, {vr(V_ONES,4)}, {x}, {c0}")
        e(f"v_mfma_f32_16x16x32_bf16 {vr(V_GRAM,4)}, {x}, {x}, {c1}")
    e.nop(8)
    t, u = V_T, V_T + 1
    e(f"v_cndmask_b32 v{t}, v{V_GRAM}, v{V_GRAM+1}, s[44:45]")
    e(f"v_cndmask_b32 v{t}, v{t}, v{V_GRAM+2}, s[46:47]")
    e(f"v_cndmask_b32 v{t}, v{t}, v{V_GRAM+3}, s[48:49]")
    e(f"v_cndmask_b32 v{t}, 0, v{t}, s[50:51]")
    e(f"v_mov_b32 v{u}, v{t}")
    e(f"v_mul_f32 v{V_SUM}, {f32bits(1.0/576):#x}, v{V_SUM}")
    e.nop(1)
    e(f"v_permlane16_swap_b32 v{u}, v{t}")
    e.nop(1)
    e(f"v_add_f32 v{t}, v{t}, v{u}")
    e(f"v_mov_b32 v{u}, v{t}")
    e(f"v_mul_f32 v{V_SUM+1}, v{V_SUM}, v{V_SUM}")
    e.nop(1)
    e(f"v_permlane32_swap_b32 v{u}, v{t}")
    e.nop(1)
    e(f"v_add_f32 v{t}, v{t}, v{u}")
    e(f"v_mul_f32 v{t}, {f32bits(1.0/576):#x}, v{t}")
    e(f"v_sub_f32 v{t}, v{t}, v{V_SUM+1}")
    e(f"v_max_f32 v{t}, 0, v{t}")
    e(f"v_add_f32 v{t}, {f32bits(1e-5):#x}, v{t}")
    e(f"v_rsq_f32 v{V_P}, v{t}")
    e.nop(1)
    if scale != 1.0:
        e(f"v_mul_f32 v{V_P}, {f32bits(scale):#x}, v{V_P}")
    e(f"v_mul_f32 v{V_P+1}, v{V_SUM}, v{V_P}")
    e(f"v_sub_f32 v{V_P+1}, 0, v{V_P+1}")


def norm_ops(s):
    ops = []
    for i in range(4):
        x = V_X + 4 * s + i
        t = V_N + 2 * i
        ops.append(f"v_lshlrev_b32 v{t}, 16, v{x}")
        ops.append(f"v_and_b32 v{t+1}, s52, v{x}")
    for i in range(4):
        t = V_N + 2 * i
        ops.append(f"v_pk_fma_f32 {vr(t,2)}, {vr(t,2)}, {vr(V_P,2)}, {vr(V_P,2)} op_sel:[0,0,1] op_sel_hi:[1,0,1]")
    for i in range(4):
        x = V_X + 4 * s + i
        t = V_N + 2 * i
        ops.append(f"v_cvt_pk_bf16_f32 v{x}, v{t}, v{t+1}")
    return ops


def gen():
    e = Emit()
    e("s_cmp_ge_u32 s2, 256")
    e("s_cbranch_scc1 L_k1_end")
    e("s_load_dwordx8 s[4:11], s[0:1], 0")
    e("s_load_dwordx2 s[12:13], s[0:1], 32")
    e("s_load_dwordx2 s[14:15], s[0:1], 96")
    code_prefetch(e, "L_k1_end", V_T, V_PF, "k1")
    e(f"v_lshrrev_b32 v1, 6, v0")
    e(f"v_and_b32 v{V_L}, 63, v0")
    e(f"v_readfirstlane_b32 s32, v1")
    e(f"v_and_b32 v{V_C}, 15, v{V_L}")
    e(f"v_lshrrev_b32 v{V_G}, 4, v{V_L}")
    e(f"v_mul_u32_u24 v{V_XOFF}, 1152, v{V_C}")
    e(f"v_lshl_add_u32 v{V_ST}, v{V_G}, 3, v{V_XOFF}")
    e(f"v_lshl_add_u32 v{V_XOFF}, v{V_G}, 4, v{V_XOFF}")
    for i in range(4):
        e(f"v_mov_b32 v{V_ONES+i}, 0x3f803f80")
    e(f"v_and_b32 v{V_T}, 3, v{V_C}")
    e(f"v_lshrrev_b32 v{V_T+1}, 2, v{V_C}")
    e(f"v_cmp_eq_u32 s[44:45], 1, v{V_T}")
    e(f"v_cmp_eq_u32 s[46:47], 2, v{V_T}")
    e(f"v_cmp_eq_u32 s[48:49], 3, v{V_T}")
    e(f"v_cmp_eq_u32 s[50:51], v{V_G}, v{V_T+1}")
    e("s_mov_b32 s52, 0xffff0000")
    e("s_and_b32 s33, s2, 7")
    e("s_lshr_b32 s34, s2, 3")
    e("s_cmp_ge_u32 s34, 24")
    e("s_cbranch_scc1 L_k1_kv")
    st0 = e.fork()

    e("s_mul_i32 s35, s34, 43")
    e("s_lshr_b32 s35, s35, 8")
    e("s_mul_i32 s36, s35, 6")
    e("s_sub_u32 s36, s34, s36")
    e("s_lshl_b32 s37, s33, 2")
    e("s_add_u32 s37, s37, s35")
    e("s_lshl_b32 s37, s37, 2")
    e("s_add_u32 s37, s37, s32")
    e("s_mul_i32 s37, s37, 18432")
    e("s_mul_i32 s38, s36, 192")
    for j in range(3):
        for l in range(64):
            i = 64 * j + l
            assert (i * 171) >> 11 == i // 12
        t = V_T
        e(f"v_add_u32 v{t}, {64*j}, v{V_L}")
        e(f"v_mul_u32_u24 v{t+1}, 171, v{t}")
        e(f"v_lshrrev_b32 v{t+1}, 11, v{t+1}")
        e(f"v_mul_u32_u24 v{t+2}, 12, v{t+1}")
        e(f"v_sub_u32 v{t+2}, v{t}, v{t+2}")
        e(f"v_lshrrev_b32 v{t+3}, 2, v{t+1}")
        e(f"v_and_b32 v{t+3}, 2, v{t+3}")
        e(f"v_xor_b32 v{t+2}, v{t+2}, v{t+3}")
        e(f"v_mul_u32_u24 v{t+1}, 1152, v{t+1}")
        e(f"v_lshl_add_u32 v{V_WOFF+j}, v{t+2}, 4, v{t+1}")
    t = V_T
    e(f"v_lshrrev_b32 v{t}, 2, v{V_C}")
    e(f"v_lshl_add_u32 v{t}, v{V_G}, 3, v{t}")
    e(f"v_mul_u32_u24 v{t}, 192, v{t}")
    e(f"v_and_b32 v{t+1}, 3, v{V_C}")
    e(f"v_lshl_add_u32 v{t}, v{t+1}, 3, v{t}")
    e(f"v_and_b32 v{t+1}, 1, v{V_G}")
    e(f"v_lshlrev_b32 v{t+1}, 5, v{t+1}")
    e(f"v_add_u32 v{V_RD}, v{t}, v{t+1}")
    e(f"v_sub_u32 v{V_RD+1}, v{t}, v{t+1}")
    e("s_mul_i32 s39, s32, 18432")
    e("s_add_u32 s39, s39, s38")
    e("s_mul_i32 s42, s32, 3072")
    e("s_waitcnt lgkmcnt(0)")
    e.srd(16, 4, X_BYTES)
    e.srd(20, 6, WQ_BYTES)
    e.srd(24, 14, WS_BYTES)
    xtok = []
    for s in range(18):
        xtok.append(e.vm(f"buffer_load_dwordx4 {vr(V_X+4*s,4)}, v{V_XOFF}, s[16:19], s37 offen offset:{64*s}"))
    wtok = []
    for u in range(9):
        for j in range(3):
            e(f"s_add_u32 m0, s42, {(12*u+j)*1024}")
            if j == 0 and u > 0:
                e(f"s_add_u32 s39, s39, {64*1152}")
            else:
                e.nop(1)
            tk = e.vm(f"buffer_load_dwordx4 v{V_WOFF+j}, s[20:23], s39 offen lds")
        wtok.append(tk)
    stats(e, xtok, QSCALE)

    def rd(s, t):
        out = []
        for half in range(2):
            off = (32 * s + 4 * half) * 192 + 32 * t
            out.append((V_W + 24 * (s & 1) + 4 * t + 2 * half, t & 1, off))
        return out

    rtok = {}
    bumped = [0]

    def issue_reads(s, t):
        if s == 9 and t == 0:
            e(f"v_add_u32 v{V_RD}, {9*32*192}, v{V_RD}")
            e(f"v_add_u32 v{V_RD+1}, {9*32*192}, v{V_RD+1}")
            bumped[0] = 9 * 32 * 192
        for (dst, b, off) in rd(s, t):
            rtok[(s, t)] = e.ds(f"ds_read_b64_tr_b16 {vr(dst,2)}, v{V_RD+b} offset:{off-bumped[0]}")

    e.wait(vm=wtok[0])
    e("s_barrier")
    for t in range(6):
        issue_reads(0, t)
    for op in norm_ops(0):
        e(op)
    for s in range(18):
        nops = norm_ops(s + 1) if s < 17 else []
        if s < 17 and (s + 1) % 2 == 0:
            e.wait(vm=wtok[(s + 1) // 2])
            e("s_barrier")
        for t in range(6):
            e.wait(ds=rtok[(s, t)])
            if t == 0:
                e.nop(1)
            c = "0" if s == 0 else vr(V_ACC + 4 * t, 4)
            e(f"v_mfma_f32_16x16x32_bf16 {vr(V_ACC+4*t,4)}, {vr(V_W+24*(s&1)+4*t,4)}, {vr(V_X+4*s,4)}, {c}")
            if s < 17:
                issue_reads(s + 1, t)
            k0, k1 = (16 * t) // 6, (16 * (t + 1)) // 6
            for op in nops[k0:k1]:
                e(op)
    e(f"s_add_u32 s37, s37, s38")
    e(f"s_add_u32 s37, s37, {WS_Q}")
    e.nop(2)
    for t in range(6):
        a = V_ACC + 4 * t
        if t == 5:
            e.nop(2)
        e(f"v_cvt_pk_bf16_f32 v{a}, v{a}, v{a+1}")
        e(f"v_cvt_pk_bf16_f32 v{a+1}, v{a+2}, v{a+3}")
        e.vm(f"buffer_store_dwordx2 {vr(a,2)}, v{V_ST}, s[24:27], s37 offen offset:{32*t}")
    e("s_endpgm")

    e.restore(st0)
    e.label("L_k1_kv")
    e("s_sub_u32 s34, s34, 24")
    e("s_and_b32 s35, s32, 1")
    e("s_lshr_b32 s36, s32, 1")
    e("s_lshl_b32 s37, s33, 3")
    e("s_add_u32 s37, s37, s34")
    e("s_mov_b32 s53, s37")
    e("s_lshl_b32 s38, s37, 1")
    e("s_add_u32 s38, s38, s36")
    e("s_mul_i32 s37, s38, 18432")
    for j in range(3):
        for l in range(64):
            i = 64 * j + l
            assert (i * 171) >> 9 == i // 3
        t = V_T
        e(f"v_add_u32 v{t}, {64*j}, v{V_L}")
        e(f"v_mul_u32_u24 v{t+1}, 171, v{t}")
        e(f"v_lshrrev_b32 v{t+1}, 9, v{t+1}")
        e(f"v_mul_u32_u24 v{t+2}, 3, v{t+1}")
        e(f"v_sub_u32 v{t+2}, v{t}, v{t+2}")
        e(f"v_mul_u32_u24 v{t+1}, 36, v{t+1}")
        e(f"v_lshl_add_u32 v{V_WOFF+j}, v{t+2}, 4, v{t+1}")
    t = V_T
    e(f"v_lshrrev_b32 v{t}, 2, v{V_C}")
    e(f"v_lshl_add_u32 v{t}, v{V_G}, 3, v{t}")
    e(f"v_mul_u32_u24 v{t}, 48, v{t}")
    e(f"v_and_b32 v{t+1}, 3, v{V_C}")
    e(f"v_lshl_add_u32 v{t}, v{t+1}, 3, v{t}")
    e("s_mul_i32 s42, s35, 30720")
    e(f"v_add_u32 v{V_RD}, s42, v{t}")
    e("s_mul_i32 s39, s36, 3072")
    e("s_add_u32 s42, s42, s39")
    e("s_mul_i32 s39, s36, 2304")
    e(f"v_lshlrev_b32 v{V_ST+1}, 1, v{V_L}")
    e(f"v_and_b32 v{t}, 7, v{V_L}")
    e(f"v_lshlrev_b32 v{t}, 11, v{t}")
    e(f"v_lshrrev_b32 v{t+1}, 3, v{V_L}")
    e(f"v_lshl_add_u32 v{V_ST+2}, v{t+1}, 4, v{t}")
    e(f"v_mul_u32_u24 v{t}, {9*2048}, v{V_G}")
    e(f"v_lshl_add_u32 v{V_ST+3}, v{V_C}, 4, v{t}")
    e("s_waitcnt lgkmcnt(0)")
    e.srd(16, 4, X_BYTES)
    e("s_cmp_eq_u32 s35, 0")
    e("s_cselect_b32 s20, s8, s10")
    e("s_cselect_b32 s21, s9, s11")
    e(f"s_mov_b32 s22, {WK_BYTES}")
    e("s_mov_b32 s23, 0x20000")
    e.srd(24, 14, WS_BYTES)
    e.srd(28, 12, WQ_BYTES)
    xtok = []
    for s in range(18):
        xtok.append(e.vm(f"buffer_load_dwordx4 {vr(V_X+4*s,4)}, v{V_XOFF}, s[16:19], s37 offen offset:{64*s}"))
    for i in range(5):
        for j in range(3):
            e(f"s_add_u32 m0, s42, {i*6144 + j*1024}")
            if j == 0 and i > 0:
                e(f"s_add_u32 s39, s39, 4608")
            else:
                e.nop(1)
            wt = e.vm(f"buffer_load_dwordx4 v{V_WOFF+j}, s[20:23], s39 offen lds")
    e("s_lshl_b32 s54, s53, 2")
    e("s_add_u32 s54, s54, s32")
    gtok = []
    for p in range(3):
        for ch in range(768):
            assert (ch * 7282) >> 16 == ch // 9
        e(f"s_add_u32 s55, s54, {256*p}")
        e("s_mul_i32 s56, s55, 7282")
        e("s_lshr_b32 s56, s56, 16")
        e("s_mul_i32 s57, s56, 9")
        e("s_sub_u32 s57, s55, s57")
        e("s_lshr_b32 s58, s56, 3")
        e("s_bfe_u32 s59, s56, 0x10002")
        e("s_bfe_u32 s60, s56, 0x10001")
        e("s_and_b32 s61, s56, 1")
        e("s_mul_i32 s62, s58, 72")
        e("s_lshl_b32 s63, s59, 3")
        e("s_add_u32 s62, s62, s63")
        e("s_lshl_b32 s63, s61, 2")
        e("s_add_u32 s62, s62, s63")
        e("s_mul_i32 s63, s61, 288")
        e("s_add_u32 s63, s63, s59")
        e("s_add_u32 s63, s63, 16")
        e("s_cmp_ge_u32 s58, 8")
        e("s_cselect_b32 s62, s63, s62")
        e(f"s_cselect_b32 s63, 72, 1")
        e(f"s_mul_i32 s63, s63, 1152")
        e("s_mul_i32 s64, s60, 36")
        e("s_add_u32 s62, s62, s64")
        e("s_mul_i32 s62, s62, 1152")
        e("s_lshl_b32 s64, s57, 7")
        e("s_add_u32 s62, s62, s64")
        for jj in range(4):
            for pp in range(2):
                s8 = 4 * (jj // 2) + 2 * pp + (jj % 2)
                if pp == 1:
                    e(f"s_add_u32 s64, s62, {18*1152}")
                tk = e.vm(f"buffer_load_ushort v{V_WO+8*p+s8}, v{V_ST+1}, s[28:31], {'s64' if pp else 's62'} offen")
            if jj < 3:
                e("s_add_u32 s62, s62, s63")
        gtok.append(tk)
        e("s_mul_i32 s62, s58, 36")
        e("s_lshr_b32 s63, s57, 1")
        e("s_mul_i32 s63, s63, 9")
        e("s_cmp_eq_u32 s57, 8")
        e("s_cselect_b32 s63, 8, s63")
        e(f"s_cselect_b32 s{70+p}, 1, 0")
        e("s_add_u32 s62, s62, s63")
        e("s_lshl_b32 s62, s62, 11")
        e("s_and_b32 s63, s56, 7")
        e("s_lshl_b32 s63, s63, 8")
        e("s_add_u32 s62, s62, s63")
        e("s_and_b32 s63, s57, 1")
        e("s_lshl_b32 s63, s63, 7")
        e("s_add_u32 s62, s62, s63")
        e(f"s_add_u32 s62, s62, {WS_WO}")
        e("s_cmp_ge_u32 s55, 648")
        e(f"s_cselect_b32 s{66+p}, {WS_DUMP}, s62")
    stats(e, xtok, 1.0)
    for s in range(18):
        for op in norm_ops(s):
            e(op)
    e.wait(vm=wt)
    e("s_barrier")
    e("s_cmp_eq_u32 s35, 1")
    e("s_cbranch_scc1 L_k1_v")
    st1 = e.fork()
    for mat in range(2):
        if mat == 1:
            e.restore(st1)
            e.label("L_k1_v")
        rt = {}

        def reads(s):
            for nt in range(2):
                for half in range(2):
                    d = V_W + 8 * (s % 3) + 4 * nt + 2 * half
                    rt[s] = e.ds(f"ds_read_b64_tr_b16 {vr(d,2)}, v{V_RD} offset:{1536*s + 192*half + 32*nt}")
        reads(0)
        reads(1)
        for s in range(18):
            if s + 2 < 18:
                reads(s + 2)
            e.wait(ds=rt[s])
            for nt in range(2):
                w = vr(V_W + 8 * (s % 3) + 4 * nt, 4)
                x = vr(V_X + 4 * s, 4)
                c = "0" if s == 0 else vr(V_ACC + 4 * nt, 4)
                a, b = (w, x) if mat == 0 else (x, w)
                e(f"v_mfma_f32_16x16x32_bf16 {vr(V_ACC+4*nt,4)}, {a}, {b}, {c}")
        t = V_T
        a = V_ACC
        if mat == 0:
            e(f"v_lshlrev_b32 v{t}, 5, v{V_C}")
            e(f"v_lshl_add_u32 v{t}, v{V_G}, 3, v{t}")
            e("s_lshl_b32 s37, s38, 9")
            e(f"s_add_u32 s37, s37, {WS_K1}")
            e(f"v_lshlrev_b32 v{t+1}, 4, v{V_C}")
            e(f"v_lshl_add_u32 v{t+1}, v{V_G}, 9, v{t+1}")
            e(f"v_mov_b32 v{t+2}, {OOB}")
            e(f"v_cmp_gt_u32 vcc, 2, v{V_G}")
            e("s_lshr_b32 s39, s53, 2")
            e("s_lshl_b32 s39, s39, 10")
            e(f"v_cndmask_b32 v{t+1}, v{t+2}, v{t+1}, vcc")
            e("s_and_b32 s42, s53, 3")
            e("s_lshl_b32 s42, s42, 2")
            e("s_add_u32 s39, s39, s42")
            e("s_lshl_b32 s42, s36, 8")
            e("s_add_u32 s39, s39, s42")
            e(f"s_add_u32 s39, s39, {WS_K2}")
            e(f"v_cmp_eq_u32 vcc, 0, v{V_G}")
            e(f"v_cvt_pk_bf16_f32 v{a}, v{a}, v{a+1}")
            e(f"v_cvt_pk_bf16_f32 v{a+1}, v{a+2}, v{a+3}")
            e(f"v_cvt_pk_bf16_f32 v{a+4}, v{a+4}, v{a+5}")
            e(f"v_mov_b32 v{t+2}, 0x3f80")
            e(f"v_cndmask_b32 v{a+4}, v{t+2}, v{a+4}, vcc")
            e.vm(f"buffer_store_dwordx2 {vr(a,2)}, v{t}, s[24:27], s37 offen")
            e.vm(f"buffer_store_dword v{a+4}, v{t+1}, s[24:27], s39 offen")
        else:
            e(f"v_lshrrev_b32 v{t+1}, 1, v{V_G}")
            e(f"v_mul_u32_u24 v{t}, 304, v{t+1}")
            e(f"v_and_b32 v{t+1}, 1, v{V_G}")
            e(f"v_lshl_add_u32 v{t}, v{t+1}, 3, v{t}")
            e(f"v_lshl_add_u32 v{t}, v{V_C}, 4, v{t}")
            e(f"v_mov_b32 v{t+2}, {OOB}")
            e(f"v_cmp_gt_u32 vcc, 3, v{V_C}")
            e("s_mul_i32 s37, s38, 608")
            e(f"s_add_u32 s37, s37, {WS_V}")
            e(f"v_cndmask_b32 v{t+1}, v{t+2}, v{t}, vcc")
            e(f"v_cmp_eq_u32 vcc, 2, v{V_C}")
            e(f"v_cvt_pk_bf16_f32 v{a}, v{a}, v{a+1}")
            e(f"v_cvt_pk_bf16_f32 v{a+1}, v{a+2}, v{a+3}")
            e(f"v_cvt_pk_bf16_f32 v{a+4}, v{a+4}, v{a+5}")
            e(f"v_cvt_pk_bf16_f32 v{a+5}, v{a+6}, v{a+7}")
            e(f"v_cndmask_b32 v{a+4}, v{a+4}, v{V_ONES}, vcc")
            e(f"v_cndmask_b32 v{a+5}, v{a+5}, v{V_ONES}, vcc")
            e.vm(f"buffer_store_dwordx2 {vr(a,2)}, v{t}, s[24:27], s37 offen")
            e.vm(f"buffer_store_dwordx2 {vr(a+4,2)}, v{t+1}, s[24:27], s37 offen offset:256")
        if mat == 1:
            e(f"v_mov_b32 v{t+2}, {MCONST:#x}")
            e(f"v_lshlrev_b32 v{t+3}, 2, v{V_L}")
            e("s_lshl_b32 s39, s53, 8")
            e(f"s_add_u32 s39, s39, {WS_MC}")
            e("s_cmp_lt_u32 s53, 5")
            e(f"s_cselect_b32 s39, s39, {WS_DUMP}")
            e.vm(f"buffer_store_dword v{t+2}, v{t+3}, s[24:27], s39 offen")
        for p in range(3):
            e.wait(vm=gtok[p])
            b = V_WO + 8 * p
            for i in range(4):
                e(f"v_lshl_or_b32 v{V_W+4*p+i}, v{b+2*i+1}, 16, v{b+2*i}")
            e(f"s_cmp_eq_u32 s{70+p}, 1")
            e(f"s_cselect_b64 vcc, -1, 0")
            e(f"v_cndmask_b32 v{t+4+p}, v{V_ST+2}, v{V_ST+3}, vcc")
            e.vm(f"buffer_store_dwordx4 {vr(V_W+4*p,4)}, v{t+4+p}, s[24:27], s{66+p} offen")
        e("s_endpgm")
    e.label("L_k1_end")
    e("s_endpgm")
    return kernel_head(NAME) + e.text(), descriptor(NAME, NV, NV)
```

```python
from asmlib import *
from layout import *
from k1 import code_prefetch

NAME = "attn_kernel"

A_K1, A_K2, A_V = 0, 64, 80
A_O = (208, 224)
A_Q1 = (240, 244)
A_Q2 = (248, 252)
V_L = 0
V_XO = 1
V_IPV, V_IWO = 2, 3
V_Q1O, V_Q2O, V_WOO = 4, 5, 6
V_PW, V_PW2, V_PR1, V_PR2, V_AW, V_L16 = 7, 8, 9, 10, 11, 12
V_FLAG = 13
V_Z = 14
V_S = (16, 32, 48)
V_X = 64
V_Y = 136
V_ACC = 176
V_T = 212
V_A = 228
V_A8 = 232
V_E = 236
V_WR = 238
V_XE = 247
V_ST = 248
L_P = 0
L_A = 10240
L_ST = 11264
L_MX = 19456
LDS = 20480

LO_BITS = f32bits(2.0 ** -80)
HI_BITS = f32bits(2.0 ** 100)

SRD_WS, SRD_X, SRD_OUT, SRD_WR = 16, 20, 24, 28


def qk1(t, rnd, sbuf):
    s = V_S[sbuf]
    return f"v_mfma_f32_32x32x16_bf16 {vr(s,16)}, {ar(A_K1+4*t,4)}, {ar(A_Q1[rnd&1],4)}, 0"


def qk2(t, rnd, sbuf):
    s = V_S[sbuf]
    return f"v_mfma_f32_32x32x8_bf16 {vr(s,16)}, {ar(A_K2+(t&~1),2)}, {ar(A_Q2[rnd&1]+2*(t&1),2)}, {vr(s,16)}"


def pv(t, rnd, sbuf, h):
    s = V_S[sbuf] + 8 * h
    return f"v_smfmac_f32_32x32x32_bf16 {ar(A_O[rnd&1],16)}, {ar(A_V+8*t+4*h,4)}, {vr(s,8)}, v{V_IPV}"


def wo_reg(ks, j):
    if ks < 8:
        return vr(V_X + 8 * j, 8), (lambda hf: vr(V_X + 8 * j + 4 * hf, 4))
    if j < 5:
        return vr(V_Y + 8 * j, 8), (lambda hf: vr(V_Y + 8 * j + 4 * hf, 4))
    b = A_V + 8 * (j - 5)
    return ar(b, 8), (lambda hf: ar(b + 4 * hf, 4))


def load_kv(e, tok):
    def k1(t):
        if t % 4 == 0:
            e(f"s_add_u32 s36, s34, {WS_K1 + 1024*t}")
        tok[("k1", t)] = e.vm(f"buffer_load_dwordx4 {ar(A_K1+4*t,4)}, v{V_T}, {sr(SRD_WS,4)}, s36 offen offset:{1024*(t%4)}")

    def k2(g):
        tok[("k2", g)] = e.vm(f"buffer_load_dwordx4 {ar(A_K2+4*g,4)}, v{V_L16}, {sr(SRD_WS,4)}, s35 offen offset:{1024*g}")

    def v(t):
        for h in range(2):
            f = 2 * t + h
            if f % 6 == 0:
                e(f"s_add_u32 s38, s37, {608*f}")
            tok[("v", t)] = e.vm(f"buffer_load_dwordx4 {ar(A_V+4*f,4)}, v{V_T+1}, {sr(SRD_WS,4)}, s38 offen offset:{608*(f%6)}")
    k1(0); k2(0); k1(1)
    for t in range(16):
        if t + 2 < 16:
            if (t + 2) % 4 == 0:
                k2((t + 2) // 4)
            k1(t + 2)
        v(t)


def kv_addr(e):
    t = V_T
    e(f"v_and_b32 v{t+2}, 31, v{V_L}")
    e(f"v_lshrrev_b32 v{t+3}, 5, v{V_L}")
    e(f"v_lshlrev_b32 v{t}, 5, v{t+2}")
    e(f"v_lshl_add_u32 v{t}, v{t+3}, 4, v{t}")
    e(f"v_and_b32 v{t+4}, 3, v{t+2}")
    e(f"v_and_b32 v{t+5}, 4, v{t+2}")
    e(f"v_lshl_add_u32 v{t+4}, v{t+5}, 1, v{t+4}")
    e(f"v_and_b32 v{t+5}, 8, v{t+2}")
    e(f"v_lshrrev_b32 v{t+5}, 1, v{t+5}")
    e(f"v_add_u32 v{t+4}, v{t+4}, v{t+5}")
    e(f"v_cmp_gt_u32 s[44:45], 16, v{t+2}")
    e(f"v_cmp_eq_u32 s[46:47], 16, v{t+2}")
    e(f"v_cmp_eq_u32 s[48:49], 20, v{t+2}")
    e(f"v_and_b32 v{t+5}, 27, v{t+2}")
    e(f"v_cmp_eq_u32 s[50:51], 17, v{t+5}")
    e(f"v_mov_b32 v{t+5}, {OOB >> 4}")
    e(f"v_cndmask_b32 v{t+4}, v{t+5}, v{t+4}, s[44:45]")
    e(f"v_cndmask_b32 v{t+4}, v{t+4}, 16, s[46:47]")
    e(f"v_cndmask_b32 v{t+4}, v{t+4}, 17, s[48:49]")
    e(f"v_cndmask_b32 v{t+4}, v{t+4}, 18, s[50:51]")
    e(f"v_mul_u32_u24 v{t+1}, 304, v{t+3}")
    e(f"v_lshl_add_u32 v{t+1}, v{t+4}, 4, v{t+1}")
    e("s_lshl_b32 s34, s32, 14")
    e("s_lshl_b32 s35, s32, 12")
    e(f"s_add_u32 s35, s35, {WS_K2}")
    e(f"s_mul_i32 s37, s32, {32*608}")
    e(f"s_add_u32 s37, s37, {WS_V}")


def load_q(e, rnd):
    b = rnd & 1
    ops = [
        lambda: e.vm(f"buffer_load_dwordx4 {ar(A_Q1[b],4)}, v{V_Q1O}, {sr(SRD_WS,4)}, 0 offen offset:{144*rnd}"),
        lambda: e.vm(f"buffer_load_dword {ar(A_Q2[b])}, v{V_Q2O}, {sr(SRD_WS,4)}, 0 offen offset:{144*rnd}"),
        lambda: e.vm(f"buffer_load_dword {ar(A_Q2[b]+3)}, v{V_Q2O}, {sr(SRD_WS,4)}, 0 offen offset:{144*rnd}"),
    ]
    return ops


def load_xw(e, tok):
    s = V_S[1]
    e.vm(f"buffer_load_dwordx4 {vr(s,4)}, v{V_XO}, {sr(SRD_X,4)}, 0 offen")
    e.vm(f"buffer_load_dwordx4 {vr(s+4,4)}, v{V_XO}, {sr(SRD_X,4)}, 0 offen offset:1152")
    e.vm(f"buffer_load_ushort v{s+8}, v{V_XE}, {sr(SRD_X,4)}, 0 offen")
    tok["x"] = e.vm(f"buffer_load_ushort v{s+9}, v{V_XE}, {sr(SRD_X,4)}, 0 offen offset:1152")


def init_acc(e):
    s = V_S[1]
    for j in range(8):
        for tk in range(2):
            src = s + 4 * tk + j // 2
            d = V_ACC + 4 * j + tk
            if j % 2 == 0:
                e(f"v_lshlrev_b32 v{d}, 16, v{src}")
            else:
                e(f"v_and_b32 v{d}, 0xffff0000, v{src}")
    e(f"v_lshlrev_b32 v{V_ACC+32}, 16, v{s+8}")
    e(f"v_lshlrev_b32 v{V_ACC+33}, 16, v{s+9}")
    for j in range(9):
        e(f"v_mov_b32 v{V_ACC+4*j+2}, 0")
        e(f"v_mov_b32 v{V_ACC+4*j+3}, 0")


def write_partials(e, ob):
    o = A_O[ob]
    return [
        lambda: e.ds(f"ds_write_b128 v{V_PW}, {ar(o,4)}"),
        lambda: e.ds(f"ds_write_b128 v{V_PW}, {ar(o+4,4)} offset:1024"),
        lambda: e.ds(f"ds_write_b64 v{V_PW2}, {ar(o+8,2)}"),
    ]


def reduce_full(e, ecur):
    b = V_S[0]
    t = V_T
    tk = []
    tk.append(e.ds(f"ds_read2st64_b64 {vr(t+8,4)}, v{V_PR2} offset0:4 offset1:9"))
    tk.append(e.ds(f"ds_read2st64_b64 {vr(t+12,4)}, v{V_PR2} offset0:14 offset1:19"))
    for w in range(4):
        for pl in range(2):
            tk.append(e.ds(f"ds_read_b128 {vr(b+8*w+4*pl,4)}, v{V_L16} offset:{L_P + 2560*w + 1024*pl}"))
    e.wait(ds=tk[1])
    e(f"v_pk_add_f32 {vr(t+8,2)}, {vr(t+8,2)}, {vr(t+10,2)}")
    e(f"v_pk_add_f32 {vr(t+12,2)}, {vr(t+12,2)}, {vr(t+14,2)}")
    e(f"v_pk_add_f32 {vr(t+8,2)}, {vr(t+8,2)}, {vr(t+12,2)}")
    e(f"v_rcp_f32 v{t+10}, v{t+9}")
    e(f"v_subrev_u32 v{t+11}, {LO_BITS:#x}, v{t+9}")
    e(f"v_max_u32 v{V_FLAG}, v{V_FLAG}, v{t+11}")
    e(f"v_mul_f32 v{ecur}, v{t+8}, v{t+10}")
    e.wait(ds=tk[5])
    for i in range(4):
        e(f"v_pk_add_f32 {vr(b+2*i,2)}, {vr(b+2*i,2)}, {vr(b+8+2*i,2)}")
    e.wait(ds=tk[9])
    for i in range(4):
        e(f"v_pk_add_f32 {vr(b+16+2*i,2)}, {vr(b+16+2*i,2)}, {vr(b+24+2*i,2)}")
    for i in range(4):
        e(f"v_pk_add_f32 {vr(b+2*i,2)}, {vr(b+2*i,2)}, {vr(b+16+2*i,2)}")
    for i in range(4):
        e(f"v_pk_mul_f32 {vr(b+2*i,2)}, {vr(b+2*i,2)}, {vr(t+10,2)} op_sel_hi:[1,0]")
    for i in range(4):
        e(f"v_cvt_pk_bf16_f32 v{V_A+i}, v{b+2*i}, v{b+2*i+1}")


def smf16(j, areg, breg):
    return f"v_smfmac_f32_16x16x64_bf16 {vr(V_ACC+4*j,4)}, {vr(areg,4)}, {breg}, v{V_IWO}"


def wo_load(e, tok, ks, j, hf):
    _, part = wo_reg(ks, j)
    tok[("wo", ks, j)] = e.vm(f"buffer_load_dwordx4 {part(hf)}, v{V_WOO}, {sr(SRD_WS,4)}, s39 offen offset:{2048*(j%2)+1024*hf}")


def wo_base(e, ks, j):
    e(f"s_mov_b32 s39, {ks*73728 + (j//2)*4096}")


def prologue(e, tok):
    e("s_cmp_ge_u32 s2, 256")
    e("s_cbranch_scc1 L_k2_end")
    e("s_load_dwordx2 s[4:5], s[0:1], 0")
    e("s_load_dwordx2 s[6:7], s[0:1], 48")
    e("s_load_dwordx2 s[8:9], s[0:1], 80")
    e("s_load_dwordx2 s[10:11], s[0:1], 96")
    code_prefetch(e, "L_k2_end", V_T, V_T + 15, "k2")
    t = V_T
    e(f"v_lshrrev_b32 v1, 6, v0")
    e(f"v_and_b32 v{V_L}, 63, v0")
    e(f"v_readfirstlane_b32 s32, v1")
    e(f"v_lshlrev_b32 v{V_L16}, 4, v{V_L}")
    e(f"v_bfe_u32 v{t}, v{V_L}, 2, 2")
    e(f"v_and_b32 v{t+1}, 1, v{V_L}")
    e(f"v_lshl_add_u32 v{t}, v{t}, 1, v{t+1}")
    e(f"v_bfe_u32 v{t+1}, v{V_L}, 4, 1")
    e(f"v_bfe_u32 v{t+2}, v{V_L}, 1, 1")
    e(f"v_lshl_add_u32 v{t+1}, v{t+1}, 1, v{t+2}")
    e(f"v_mul_u32_u24 v{t}, 1152, v{t}")
    e(f"v_mad_u32_u24 v{t}, v{t+1}, 36, v{t}")
    e("s_mul_i32 s33, s2, 9216")
    e(f"v_add_u32 v{t}, s33, v{t}")
    if WS_Q:
        e(f"v_add_u32 v{t}, {WS_Q}, v{t}")
    e(f"v_lshrrev_b32 v{t+3}, 5, v{V_L}")
    e(f"v_lshl_add_u32 v{V_Q1O}, v{t+3}, 4, v{t}")
    e(f"v_add_u32 v{t}, 32, v{t}")
    e(f"v_cmp_eq_u32 vcc, 0, v{t+3}")
    e(f"v_mov_b32 v{t+4}, {WS_MC}")
    e(f"v_mul_u32_u24 v{V_IWO}, 0xaaaa, v{t+2}")
    e(f"v_cndmask_b32 v{V_Q2O}, v{t+4}, v{t}, vcc")
    e(f"v_add_u32 v{V_IWO}, 0x4444, v{V_IWO}")
    e(f"v_lshrrev_b32 v{t}, 4, v{V_L}")
    e(f"v_mul_u32_u24 v{t}, 2304, v{t}")
    e(f"v_add_u32 v{t}, s33, v{t}")
    e(f"v_and_b32 v{t+1}, 15, v{V_L}")
    e("s_lshl_b32 s34, s32, 8")
    e(f"v_lshl_add_u32 v{t+6}, v{t+1}, 4, s34")
    e("s_lshl_b32 s34, s32, 5")
    e("s_add_u32 s34, s34, 1024")
    e(f"v_lshl_add_u32 v{t+7}, v{t+1}, 1, s34")
    e(f"v_add_u32 v{V_XO}, v{t}, v{t+6}")
    e(f"v_add_u32 v{V_XE}, v{t}, v{t+7}")
    kv_addr(e)
    e("s_waitcnt lgkmcnt(0)")
    e.srd(SRD_WS, 10, WS_BYTES)
    for op in load_q(e, 0):
        tok["q0"] = op()
    e.srd(SRD_X, 4, X_BYTES)
    e.srd(SRD_WR, 6, 1152)
    load_xw(e, tok)
    s = V_S[2]
    e.vm(f"buffer_load_dwordx4 {vr(s,4)}, v{t+6}, {sr(SRD_WR,4)}, 0 offen")
    tok["wr"] = e.vm(f"buffer_load_ushort v{s+4}, v{t+7}, {sr(SRD_WR,4)}, 0 offen")
    load_kv(e, tok)
    e.srd(SRD_OUT, 8, X_BYTES)
    e(f"v_mov_b32 v{V_IPV}, 0xdddd")
    e(f"v_mov_b32 v{V_FLAG}, 0")
    e(f"v_mov_b32 v{V_Z}, 0")
    e(f"v_mov_b32 v{V_Z+1}, 0")
    for b in range(2):
        e(f"v_accvgpr_write_b32 {ar(A_Q2[b]+1)}, 0")
        e(f"v_accvgpr_write_b32 {ar(A_Q2[b]+2)}, 0")
    e(f"v_mfma_f32_32x32x8_bf16 {ar(A_O[0],16)}, {vr(V_Z,2)}, {vr(V_Z,2)}, 0")
    e(f"v_mfma_f32_32x32x8_bf16 {ar(A_O[1],16)}, {vr(V_Z,2)}, {vr(V_Z,2)}, 0")
    e(f"s_mul_i32 s34, s32, 18432")
    e(f"s_add_u32 s34, s34, {WS_WO}")
    e(f"v_add_u32 v{V_WOO}, s34, v{V_L16}")
    e(f"s_mul_i32 s34, s32, 2560")
    e(f"v_add_u32 v{V_PW}, s34, v{V_L16}")
    e(f"v_lshlrev_b32 v{V_PR2}, 3, v{V_L}")
    e(f"s_add_u32 s34, s34, 2048")
    e(f"v_add_u32 v{V_PW2}, s34, v{V_PR2}")
    e("s_lshr_b32 s34, s32, 1")
    e("s_lshl_b32 s34, s34, 10")
    e("s_and_b32 s35, s32, 1")
    e("s_lshl_b32 s35, s35, 3")
    e("s_add_u32 s34, s34, s35")
    e(f"v_add_u32 v{V_PR1}, s34, v{V_L16}")
    e("s_lshl_b32 s34, s32, 2")
    e(f"s_add_u32 s34, s34, {L_A}")
    e(f"v_add_u32 v{V_AW}, s34, v{V_L16}")
    e.wait(vm=tok["wr"])
    init_acc(e)
    for j in range(8):
        if j % 2 == 0:
            e(f"v_lshlrev_b32 v{V_WR+j}, 16, v{s+j//2}")
        else:
            e(f"v_and_b32 v{V_WR+j}, 0xffff0000, v{s+j//2}")
    e(f"v_lshlrev_b32 v{V_WR+8}, 16, v{s+4}")
    sw = V_ST + 6
    e(f"v_add_f32 v{sw}, v{V_WR}, v{V_WR+1}")
    for j in range(2, 9):
        e(f"v_add_f32 v{sw}, v{sw}, v{V_WR+j}")
    for sh in (8, 4, 2, 1):
        e.nop(2)
        e(f"v_add_f32_dpp v{sw}, v{sw}, v{sw} row_ror:{sh} row_mask:0xf bank_mask:0xf")
    e(f"v_mov_b32 v{V_ST+7}, 0")


def mainloop(e, tok):
    T = V_T
    ex = {(r, t): dict(A=[], B=[], C=[], D=[], M=[], V={}) for r in range(8) for t in range(16)}

    def add(r, t, pos, f):
        ex[(r, t)][pos].append(f)

    def valu(r, t, at, ops):
        ex[(r, t)]["V"].setdefault(at, []).extend(ops)

    for t in range(16):
        def w(t=t):
            need = [tok[("v", t)]]
            if t + 2 < 16:
                need.append(tok[("k1", t + 2)])
            e.wait(vm=max(need))
        add(0, t, "D", w)
    for r in range(7):
        t0 = 5 if r == 0 else 0
        ops = load_q(e, r + 1)

        def last(op=ops[2], r=r):
            tok[("q", r + 1)] = op()
        add(r, t0, "A", ops[0]); add(r, t0, "C", ops[1]); add(r, t0, "C", last)
        add(r, 14, "D", lambda r=r: e.wait(vm=tok[("q", r + 1)]))
    for j in range(9):
        t = 6 + j
        if j % 2 == 0:
            add(0, t, "A", lambda j=j: wo_base(e, 0, j))
        add(0, t, "C", lambda j=j: wo_load(e, tok, 0, j, 0))
        add(0, t, "C", lambda j=j: wo_load(e, tok, 0, j, 1))
    for j in range(5):
        r, t = (1, 12 + j) if j < 4 else (2, 12)
        if j % 2 == 0:
            add(r, t, "A", lambda j=j: wo_base(e, 8, j))
        add(r, t, "C", lambda j=j: wo_load(e, tok, 8, j, 0))
        add(r, t, "D", lambda j=j: wo_load(e, tok, 8, j, 1))
    for j in range(5, 9):
        t = j - 3
        add(7, t, "A", lambda j=j: wo_base(e, 8, j))
        add(7, t, "B", lambda j=j: wo_load(e, tok, 8, j, 0))
        add(7, t, "B", lambda j=j: wo_load(e, tok, 8, j, 1))
    for r in range(1, 8):
        p = r - 1
        wr = write_partials(e, p & 1)
        add(r, 1, "C", wr[0]); add(r, 1, "D", wr[1]); add(r, 1, "D", wr[2])
        add(r, 2, "C", lambda: e.wait(ds=e.ds_n)); add(r, 2, "C", lambda: e("s_barrier"))
        add(r, 2, "D", lambda: e.ds(f"ds_read2st64_b64 {vr(T+8,4)}, v{V_PR2} offset0:4 offset1:9"))
        add(r, 2, "D", lambda: e.ds(f"ds_read2st64_b64 {vr(T+12,4)}, v{V_PR2} offset0:14 offset1:19"))
        add(r, 3, "A", lambda: e.ds(f"ds_read2st64_b64 {vr(T,4)}, v{V_PR1} offset0:0 offset1:5"))
        add(r, 3, "C", lambda: e.ds(f"ds_read2st64_b64 {vr(T+4,4)}, v{V_PR1} offset0:10 offset1:15"))
        add(r, 4, "A", lambda: e.wait(ds=e.ds_n))
        valu(r, 4, 1, [f"v_pk_add_f32 {vr(T+8,2)}, {vr(T+8,2)}, {vr(T+10,2)}",
                       f"v_pk_add_f32 {vr(T+12,2)}, {vr(T+12,2)}, {vr(T+14,2)}"])
        valu(r, 4, 2, [f"v_pk_add_f32 {vr(T,2)}, {vr(T,2)}, {vr(T+2,2)}",
                       f"v_pk_add_f32 {vr(T+8,2)}, {vr(T+8,2)}, {vr(T+12,2)}"])
        valu(r, 4, 5, [f"v_pk_add_f32 {vr(T+4,2)}, {vr(T+4,2)}, {vr(T+6,2)}",
                       f"v_rcp_f32 v{T+10}, v{T+9}"])
        valu(r, 4, 6, [f"v_pk_add_f32 {vr(T,2)}, {vr(T,2)}, {vr(T+4,2)}",
                       f"v_subrev_u32 v{T+11}, s42, v{T+9}"])
        valu(r, 4, 9, [f"v_pk_mul_f32 {vr(T,2)}, {vr(T,2)}, {vr(T+10,2)} op_sel_hi:[1,0]",
                       f"v_mul_f32 v{V_E+(p&1)}, v{T+8}, v{T+10}"])
        valu(r, 4, 10, [f"v_cvt_pk_bf16_f32 v{T}, v{T}, v{T+1}",
                        f"v_max_u32 v{V_FLAG}, v{V_FLAG}, v{T+11}"])
        if p & 1:
            valu(r, 4, 13, [f"v_cvt_pk_bf16_f32 v{V_A8+p//2}, v{V_E}, v{V_E+1}"])
        add(r, 4, "D", lambda: e.ds(f"ds_write_b32 v{V_AW}, v{T}"))
        add(r, 5, "C", lambda: e.wait(ds=e.ds_n)); add(r, 5, "C", lambda: e("s_barrier"))
        add(r, 5, "D", lambda: e.ds(f"ds_read_b128 {vr(V_A,4)}, v{V_L16} offset:{L_A}"))
        if r < 7:
            ex[(r, 6)]["M"].append((f"v_mfma_f32_32x32x8_bf16 {ar(A_O[p&1],16)}, {vr(V_Z,2)}, {vr(V_Z,2)}, 0", [], 3))
        add(r, 6, "D", lambda p=p: e.wait(vm=tok[("wo", p, 8)], ds=e.ds_n))
        for j in range(9):
            t = 7 + j // 2
            if j % 2 == 0:
                add(r, t, "A", lambda j=j, r=r: wo_base(e, r, j))
            sh = [lambda j=j, r=r: wo_load(e, tok, r, j, 0), lambda j=j, r=r: wo_load(e, tok, r, j, 1)]
            ex[(r, t)]["M"].append((smf16(j, V_A, wo_reg(p, j)[0]), sh, 1))

    e(f"s_mov_b32 s42, {LO_BITS:#x}")
    e.wait(vm=max(tok["q0"], tok[("k1", 1)]))
    e(qk1(0, 0, 0))
    e(qk2(0, 0, 0))
    e.nop(16)
    e(".p2align 3")
    for tau in range(128):
        r, t = divmod(tau, 16)
        x = ex[(r, t)]
        segs = []
        if tau < 127:
            rn, tn = divmod(tau + 1, 16)
            segs.append([qk1(tn, rn, (tau + 1) % 3), x["A"], 4])
            segs.append([qk2(tn, rn, (tau + 1) % 3), x["B"], 4])
        else:
            segs.append([None, x["A"], 4]); segs.append([None, x["B"], 4])
        if tau > 0:
            rp, tp = divmod(tau - 1, 16)
            segC = [pv(tp, rp, (tau - 1) % 3, 0), x["C"], 4]
            segD = [pv(tp, rp, (tau - 1) % 3, 1), x["D"], 4]
        else:
            segC = [None, x["C"], 4]; segD = [None, x["D"], 4]
        M = x["M"]
        if len(M) == 0:
            segs += [segC, segD]
        elif len(M) == 1 and M[0][2] == 1:
            segD[2] = 3
            segs += [segC, segD, [M[0][0], M[0][1], 1]]
        elif len(M) == 1:
            segs[0][2] = 3; segC[2] = 3; segD[2] = 3
            segs += [segC, [M[0][0], M[0][1], 3], segD]
        else:
            segC[2] = 3; segD[2] = 3
            segs += [segC, [M[0][0], M[0][1], 1], segD, [M[1][0], M[1][1], 1]]
        assert sum(s[2] for s in segs) == 16
        i = 0
        sb = V_S[tau % 3]
        for m, sh, n in segs:
            if m:
                e(m)
            for f in sh:
                f()
            for _ in range(n):
                e(f"v_exp_f32 v{sb+i}, v{sb+i}")
                for op in x["V"].get(i, []):
                    e(op)
                i += 1
    e(pv(15, 7, 127 % 3, 0))
    e.nop(1)
    e(pv(15, 7, 127 % 3, 1))


def final_proj(e, tok):
    e.nop(12)
    for op in write_partials(e, 1):
        op()
    e.wait(ds=e.ds_n)
    e("s_barrier")
    reduce_full(e, V_E + 1)
    e(f"v_cvt_pk_bf16_f32 v{V_A8+3}, v{V_E}, v{V_E+1}")
    e(f"v_cmp_lt_u32 vcc, {HI_BITS-LO_BITS:#x}, v{V_FLAG}")
    e.wait(vm=e.vm_n)
    e("s_cbranch_vccnz L_k2_slow")
    for j in range(9):
        e(smf16(j, V_A, wo_reg(7, j)[0]))
    for j in range(9):
        e(smf16(j, V_A8, wo_reg(8, j)[0]))


def ln2_tail(e):
    st = V_ST
    T = V_T
    e.label("L_k2_ln2")
    e(f"s_lshl_b32 s34, s32, 11")
    e(f"s_add_u32 s34, s34, {L_ST}")
    e(f"v_add_u32 v{T+14}, s34, v{V_L16}")
    e(f"v_lshrrev_b32 v{T+12}, 3, v{V_L}")
    e(f"v_and_b32 v{T+12}, 6, v{T+12}")
    e(f"s_lshl_b32 s34, s2, 3")
    e(f"v_add_u32 v{T+12}, s34, v{T+12}")
    e(f"v_and_b32 v{T+13}, 15, v{V_L}")
    H = lambda j: vr(V_ACC + 4 * j, 2)
    N = lambda j: vr(V_ACC + 4 * j + 2, 2)
    for j in range(9):
        e(f"v_pk_add_f32 {H(j)}, {H(j)}, {N(j)}")
        if j == 1:
            e(f"v_pk_mul_f32 {vr(st+2,2)}, {H(0)}, {H(0)}")
            e(f"v_pk_mul_f32 {vr(st+4,2)}, {H(0)}, {vr(V_WR,2)} op_sel_hi:[1,0]")
            e(f"v_pk_add_f32 {vr(st,2)}, {H(0)}, {H(1)}")
        if j >= 1:
            if j >= 2:
                e(f"v_pk_add_f32 {vr(st,2)}, {vr(st,2)}, {H(j)}")
            e(f"v_pk_fma_f32 {vr(st+2,2)}, {H(j)}, {H(j)}, {vr(st+2,2)}")
            sel = f"op_sel:[0,{j&1},0] op_sel_hi:[1,{j&1},1]"
            e(f"v_pk_fma_f32 {vr(st+4,2)}, {H(j)}, {vr(V_WR+(j&~1),2)}, {vr(st+4,2)} {sel}")
    e(f"v_or_b32 v{T+13}, s32, v{T+13}")
    for sh in (8, 4, 2, 1):
        for i in range(6):
            e(f"v_add_f32_dpp v{st+i}, v{st+i}, v{st+i} row_ror:{sh} row_mask:0xf bank_mask:0xf")
    e.ds(f"ds_write_b128 v{T+14}, {vr(st,4)}")
    e.ds(f"ds_write_b128 v{T+14}, {vr(st+4,4)} offset:1024")
    e(f"v_cmp_eq_u32 vcc, 0, v{T+13}")
    e(f"v_lshlrev_b32 v{T+13}, 2, v{T+12}")
    e(f"v_mov_b32 v{T+11}, {OOB}")
    e(f"v_cndmask_b32 v{T+13}, v{T+11}, v{T+13}, vcc")
    e.wait(ds=e.ds_n)
    e("s_barrier")
    b = V_S[0]
    tk = []
    for w in range(4):
        for pl in range(2):
            tk.append(e.ds(f"ds_read_b128 {vr(b+8*w+4*pl,4)}, v{V_L16} offset:{L_ST + 2048*w + 1024*pl}"))
    e(f"s_mov_b32 s34, {f32bits(1.0/576):#x}")
    e(f"s_mov_b32 s35, s34")
    e.wait(ds=tk[3])
    for i in range(4):
        e(f"v_pk_add_f32 {vr(b+2*i,2)}, {vr(b+2*i,2)}, {vr(b+8+2*i,2)}")
    e.wait(ds=tk[7])
    for i in range(4):
        e(f"v_pk_add_f32 {vr(b+16+2*i,2)}, {vr(b+16+2*i,2)}, {vr(b+24+2*i,2)}")
    for i in range(4):
        e(f"v_pk_add_f32 {vr(b+2*i,2)}, {vr(b+2*i,2)}, {vr(b+16+2*i,2)}")
    e(f"v_pk_mul_f32 {vr(b,2)}, {vr(b,2)}, s[34:35]")
    e(f"v_pk_mul_f32 {vr(b+2,2)}, {vr(b+2,2)}, s[34:35]")
    e(f"v_pk_fma_f32 {vr(b+2,2)}, {vr(b,2)}, {vr(b,2)}, {vr(b+2,2)} neg_lo:[1,0,0] neg_hi:[1,0,0]")
    e(f"v_pk_fma_f32 {vr(b+4,2)}, {vr(b,2)}, {vr(b+6,2)}, {vr(b+4,2)} op_sel_hi:[1,0,1] neg_lo:[1,0,0] neg_hi:[1,0,0]")
    for i in range(2):
        e(f"v_max_f32 v{b+2+i}, 0, v{b+2+i}")
    for i in range(2):
        e(f"v_add_f32 v{b+2+i}, {f32bits(1e-5):#x}, v{b+2+i}")
    for i in range(2):
        e(f"v_rsq_f32 v{b+2+i}, v{b+2+i}")
    e(f"v_add_u32 v{T+11}, 1, v{T+12}")
    e(f"v_pk_mul_f32 {vr(b+4,2)}, {vr(b+4,2)}, {vr(b+2,2)}")
    e(f"v_pk_mul_f32 {vr(b,2)}, {vr(b,2)}, {vr(b+2,2)} neg_lo:[1,0] neg_hi:[1,0]")
    e("s_mov_b32 s34, 0x7ff")
    for i in range(2):
        e(f"v_ashrrev_i32 v{b+8+i}, 31, v{b+4+i}")
    for i in range(2):
        e(f"v_or_b32 v{b+8+i}, 0x80000000, v{b+8+i}")
    for i in range(2):
        e(f"v_xor_b32 v{b+4+i}, v{b+4+i}, v{b+8+i}")
    e(f"v_bfi_b32 v{b+4}, s34, v{T+12}, v{b+4}")
    e(f"v_bfi_b32 v{b+5}, s34, v{T+11}, v{b+5}")
    e(f"s_mov_b32 s34, {WS_R}")
    e.vm(f"buffer_store_dwordx2 {vr(b+4,2)}, v{T+13}, {sr(SRD_WS,4)}, s34 offen")
    for j in range(9):
        e(f"v_pk_fma_f32 {N(j)}, {H(j)}, {vr(b+2,2)}, {vr(b,2)}")
    e(f"s_mov_b32 s34, {WS_HN}")
    o = V_S[1]
    for which in range(2):
        src = (lambda j, tk: V_ACC + 4 * j + 2 + tk) if which == 0 else (lambda j, tk: V_ACC + 4 * j + tk)
        if which == 1:
            for j in range(9):
                e(f"v_pk_add_f32 {H(j)}, {H(j)}, {N(j)}")
        d = o + 12 * which
        srd, so = (SRD_WS, "s34") if which == 0 else (SRD_OUT, "0")
        for tk in range(2):
            for i in range(4):
                e(f"v_cvt_pk_bf16_f32 v{d+4*tk+i}, v{src(2*i,tk)}, v{src(2*i+1,tk)}")
            e.vm(f"buffer_store_dwordx4 {vr(d+4*tk,4)}, v{V_XO}, {sr(srd,4)}, {so} offen offset:{1152*tk}")
        e(f"v_cvt_pk_bf16_f32 v{d+8}, v{src(8,0)}, v{src(8,1)}")
        e.vm(f"buffer_store_short v{d+8}, v{V_XE}, {sr(srd,4)}, {so} offen")
        e.vm(f"buffer_store_short_d16_hi v{d+8}, v{V_XE}, {sr(srd,4)}, {so} offen offset:1152")


def slow_path(e):
    T = V_T
    e.label("L_k2_slow")
    e.wait_all()
    e("s_barrier")
    tok = {}
    kv_addr(e)
    load_xw(e, tok)
    load_kv(e, tok)
    e.wait_all()
    init_acc(e)
    e(f"v_lshlrev_b32 v{V_Y+9}, 2, v{V_L}")
    e(f"s_lshl_b32 s34, s32, 8")
    e(f"v_add_u32 v{V_Y+10}, s34, v{V_Y+9}")
    e("s_mov_b32 s43, 0")
    e("s_mov_b32 s44, 0")
    e("s_mov_b32 s45, 0")
    e.label("L_k2_slow_round")
    e.vm(f"buffer_load_dwordx4 {ar(A_Q1[0],4)}, v{V_Q1O}, {sr(SRD_WS,4)}, s44 offen")
    e.vm(f"buffer_load_dword {ar(A_Q2[0])}, v{V_Q2O}, {sr(SRD_WS,4)}, s44 offen")
    e.vm(f"buffer_load_dword {ar(A_Q2[0]+3)}, v{V_Q2O}, {sr(SRD_WS,4)}, s44 offen")
    for j in range(9):
        if j % 2 == 0:
            e(f"s_add_u32 s39, s45, {(j//2)*4096}")
        wo_load(e, tok, 0, j, 0)
        wo_load(e, tok, 0, j, 1)
    e(f"v_mfma_f32_32x32x8_bf16 {ar(A_O[0],16)}, {vr(V_Z,2)}, {vr(V_Z,2)}, 0")
    m = V_Y + 8
    e(f"v_mov_b32 v{m}, 0xff800000")
    e.wait_all()
    s = V_S[0]
    for t in range(16):
        e(qk1(t, 0, 0))
        e(qk2(t, 0, 0))
        e.nop(12)
        for i in range(8):
            e(f"v_max3_f32 v{m}, v{m}, v{s+2*i}, v{s+2*i+1}")
    e(f"v_mov_b32 v{T}, v{m}")
    e.nop(2)
    e(f"v_permlane32_swap_b32 v{T}, v{m}")
    e.nop(2)
    e(f"v_max_f32 v{m}, v{m}, v{T}")
    e.ds(f"ds_write_b32 v{V_Y+10}, v{m} offset:{L_MX}")
    e.wait_all()
    e("s_barrier")
    for w in range(4):
        e.ds(f"ds_read_b32 v{T+w}, v{V_Y+9} offset:{L_MX+256*w}")
    e.wait_all()
    e(f"v_max3_f32 v{m}, v{T}, v{T+1}, v{T+2}")
    e(f"v_max_f32 v{m}, v{m}, v{T+3}")
    for t in range(16):
        e(qk1(t, 0, 0))
        e(qk2(t, 0, 0))
        e.nop(12)
        for i in range(16):
            e(f"v_sub_f32 v{s+i}, v{s+i}, v{m}")
        for i in range(16):
            e(f"v_exp_f32 v{s+i}, v{s+i}")
        e.nop(2)
        e(pv(t, 0, 0, 0))
        e(pv(t, 0, 0, 1))
    e.nop(12)
    for op in write_partials(e, 0):
        op()
    e.wait_all()
    e("s_barrier")
    for i in range(7):
        e(f"v_mov_b32 v{V_Y+i}, v{V_Y+i+1}")
    reduce_full(e, V_Y + 7)
    e.nop(2)
    for j in range(9):
        e(smf16(j, V_A, wo_reg(0, j)[0]))
    e.nop(8)
    e("s_add_u32 s43, s43, 1")
    e("s_add_u32 s44, s44, 144")
    e("s_add_u32 s45, s45, 73728")
    e("s_cmp_lt_u32 s43, 8")
    e("s_cbranch_scc1 L_k2_slow_round")
    for j in range(9):
        if j % 2 == 0:
            e(f"s_add_u32 s39, s45, {(j//2)*4096}")
        wo_load(e, tok, 0, j, 0)
        wo_load(e, tok, 0, j, 1)
    for i in range(4):
        e(f"v_cvt_pk_bf16_f32 v{V_A8+i}, v{V_Y+2*i}, v{V_Y+2*i+1}")
    e.wait_all()
    e.nop(2)
    for j in range(9):
        e(smf16(j, V_A8, wo_reg(0, j)[0]))
    e("s_branch L_k2_ln2")


def gen():
    e = Emit()
    tok = {}
    prologue(e, tok)
    mainloop(e, tok)
    final_proj(e, tok)
    ln2_tail(e)
    e("s_endpgm")
    slow_path(e)
    e.label("L_k2_end")
    e("s_endpgm")
    return kernel_head(NAME) + e.text(), descriptor(NAME, 512, 256)
```

```python
from asmlib import *
from layout import *
from k1 import code_prefetch

NAME3 = "ffn_kernel"
NAME4 = "fin_kernel"
L_G, L_U, L_D, L_R = 0, 40960, 81920, 118784
LDS3 = L_R + 16384
LDS4 = 4096


def gen3():
    e = Emit()
    V_L, V_C, V_G = 0, 2, 3
    T = 4
    KEY = 16
    D = 48
    XF = 80
    WF = 100
    ACC = 180
    DF = 196
    e("s_cmp_ge_u32 s2, 144")
    e("s_cbranch_scc1 L_k3_end")
    e("s_load_dwordx4 s[4:7], s[0:1], 56")
    e("s_load_dwordx2 s[8:9], s[0:1], 72")
    e("s_load_dwordx2 s[10:11], s[0:1], 96")
    code_prefetch(e, "L_k3_end", T, T + 11, "k3")
    e(f"v_lshrrev_b32 v1, 6, v0")
    e(f"v_and_b32 v{V_L}, 63, v0")
    e(f"v_readfirstlane_b32 s32, v1")
    e(f"v_and_b32 v{V_C}, 15, v{V_L}")
    e(f"v_lshrrev_b32 v{V_G}, 4, v{V_L}")
    e(f"v_lshlrev_b32 v{T}, 4, v{V_L}")
    e(f"v_lshrrev_b32 v{T+1}, 2, v{V_L}")
    e(f"v_and_b32 v{T+2}, 3, v{V_L}")
    e(f"v_lshrrev_b32 v{T+3}, 4, v{V_L}")
    e(f"v_and_b32 v{T+3}, 2, v{T+3}")
    e(f"v_xor_b32 v{T+2}, v{T+2}, v{T+3}")
    e(f"v_mul_u32_u24 v{T+1}, 9216, v{T+1}")
    e(f"v_lshl_add_u32 v{T+1}, v{T+2}, 4, v{T+1}")
    e("s_waitcnt lgkmcnt(0)")
    e.srd(16, 10, WS_BYTES)
    e.srd(20, 4, WF_BYTES)
    e.srd(24, 6, WF_BYTES)
    e.srd(28, 8, WF_BYTES)
    for i in range(8):
        if i % 4 == 0:
            e(f"s_mov_b32 s34, {WS_R + 1024*i}")
        ktok = e.vm(f"buffer_load_dwordx4 {vr(KEY+4*i,4)}, v{T}, s[16:19], s34 offen offset:{1024*(i%4)}")
    e("s_lshl_b32 s35, s2, 6")
    e("s_mul_i32 s36, s32, 10240")
    for i in range(5):
        e(f"s_add_u32 s37, s32, {4*i}")
        e("s_min_u32 s37, s37, 17")
        e(f"s_lshl_b32 s{50+i}, s37, 6")
        e(f"s_mul_i32 s37, s37, {32*9216}")
        e("s_add_u32 s37, s37, s35")
        e(f"s_add_u32 s38, s37, {16*9216}")
        for mat in range(2):
            for hh in range(2):
                e(f"s_add_u32 m0, s36, {(L_G, L_U)[mat] + 2048*i + 1024*hh}")
                e.nop(1)
                wtok = e.vm(f"buffer_load_dwordx4 v{T+1}, s[{20+4*mat}:{23+4*mat}], s{37+hh} offen lds")
    e("s_mul_i32 s37, s2, 36864")
    e("s_mul_i32 s38, s32, 9216")
    e("s_add_u32 s37, s37, s38")
    for i in range(9):
        e(f"s_add_u32 m0, s38, {L_D + 1024*i}")
        e.nop(1)
        dtok = e.vm(f"buffer_load_dwordx4 v{T}, s[28:31], s37 offen lds")
        e("s_add_u32 s37, s37, 1024")
    e.wait(vm=ktok)
    e("s_mov_b32 s33, -1")
    for r in range(8):
        for i in range(32):
            e(f"v_sub_u32 v{D+i}, s33, v{KEY+i}")
        e(f"v_min3_u32 v{D}, v{D}, v{D+1}, v{D+2}")
        for i in range(3, 31, 2):
            e(f"v_min3_u32 v{D}, v{D}, v{D+i}, v{D+i+1}")
        e(f"v_min_u32 v{D}, v{D}, v{D+31}")
        for sh in (8, 4, 2, 1):
            e.nop(2)
            e(f"v_min_u32_dpp v{D}, v{D}, v{D} row_ror:{sh} row_mask:0xf bank_mask:0xf")
        e.nop(1)
        for q in range(4):
            e(f"v_readlane_b32 s{40+q}, v{D}, {16*q}")
        e("s_min_u32 s40, s40, s41")
        e("s_min_u32 s42, s42, s43")
        e("s_min_u32 s40, s40, s42")
        e(f"s_sub_u32 s{60+r}, s33, s40")
        e(f"s_sub_u32 s33, s{60+r}, 1")
    e(f"v_and_b32 v{T+2}, 7, v{V_L}")
    e(f"v_mov_b32 v{T+3}, s60")
    for r in range(1, 8):
        e(f"v_cmp_eq_u32 vcc, {r}, v{T+2}")
        e(f"v_mov_b32 v{T+4}, s{60+r}")
        e.nop(1)
        e(f"v_cndmask_b32 v{T+3}, v{T+3}, v{T+4}, vcc")
    e(f"v_and_b32 v{T+4}, 0x7ff, v{T+3}")
    e(f"v_mul_u32_u24 v{T+4}, 1152, v{T+4}")
    e(f"v_lshl_add_u32 v{T+4}, v{V_G}, 4, v{T+4}")
    e(f"v_add_u32 v{T+4}, {WS_HN}, v{T+4}")
    e("s_cmp_ge_u32 s32, 2")
    e(f"s_cselect_b32 s34, {OOB}, 0")
    e(f"v_add_u32 v{T+5}, s34, v{T+4}")
    for i in range(5):
        xtok = e.vm(f"buffer_load_dwordx4 {vr(XF+4*i,4)}, v{T+4+(i==4)}, s[16:19], s{50+i} offen")
    e(f"v_lshlrev_b32 v{T+6}, 2, v{T+2}")
    e("s_or_b32 s34, s2, s32")
    e("s_cmp_eq_u32 s34, 0")
    e(f"s_cselect_b32 s34, 0, {WS_DUMP-WS_SEL}")
    e(f"s_add_u32 s34, s34, {WS_SEL}")
    e.vm(f"buffer_store_dword v{T+3}, v{T+6}, s[16:19], s34 offen")
    e(f"v_lshrrev_b32 v{T+6}, 2, v{V_C}")
    e(f"v_lshl_add_u32 v{T+7}, v{V_G}, 3, v{T+6}")
    e(f"v_lshlrev_b32 v{T+7}, 6, v{T+7}")
    e(f"v_and_b32 v{T+8}, 3, v{V_C}")
    e(f"v_lshl_add_u32 v{T+7}, v{T+8}, 3, v{T+7}")
    e(f"v_add_u32 v{T+7}, s36, v{T+7}")
    e(f"v_and_b32 v{T+9}, 1, v{V_G}")
    e(f"v_lshlrev_b32 v{T+9}, 5, v{T+9}")
    e(f"v_sub_u32 v{T+10}, v{T+7}, v{T+9}")
    e(f"v_add_u32 v{T+7}, v{T+7}, v{T+9}")
    e(f"v_lshl_add_u32 v{T+6}, v{V_G}, 2, v{T+6}")
    e(f"v_mul_u32_u24 v{T+6}, 1152, v{T+6}")
    e(f"v_lshl_add_u32 v{T+6}, v{T+8}, 3, v{T+6}")
    e("s_mul_i32 s34, s32, 288")
    e(f"s_add_u32 s34, s34, {L_D}")
    e(f"v_add_u32 v{T+6}, s34, v{T+6}")
    e.wait(vm=dtok)
    e("s_barrier")
    for i in range(5):
        for mat in range(2):
            for nt in range(2):
                for hh in range(2):
                    d = WF + 16 * i + 8 * mat + 4 * nt + 2 * hh
                    e.ds(f"ds_read_b64_tr_b16 {vr(d,2)}, v{T+7+3*nt} offset:{(L_G,L_U)[mat] + 2048*i + 256*hh + 32*nt}")
        e.wait(ds=e.ds_n)
    for j in range(9):
        for hh in range(2):
            e.ds(f"ds_read_b64_tr_b16 {vr(DF+4*j+2*hh,2)}, v{T+6} offset:{18432*hh + 32*j}")
        if j % 4 == 3:
            e.wait(ds=e.ds_n)
    e.wait(vm=xtok, ds=e.ds_n)
    for i in range(5):
        for a in range(4):
            c = "0" if i == 0 else vr(ACC + 4 * a, 4)
            e(f"v_mfma_f32_16x16x32_bf16 {vr(ACC+4*a,4)}, {vr(WF+16*i+4*a,4)}, {vr(XF+4*i,4)}, {c}")
    e("s_lshl_b32 s34, s32, 12")
    e(f"s_add_u32 s34, s34, {L_R}")
    e(f"v_add_u32 v{T+8}, s34, v{T}")
    e(f"v_add_u32 v{T+9}, {L_R}, v{T}")
    e.nop(8)
    for a in range(4):
        e.ds(f"ds_write_b128 v{T+8}, {vr(ACC+4*a,4)} offset:{1024*a}")
    e.wait(ds=e.ds_n)
    e("s_barrier")
    R = WF
    for w in range(4):
        for a in range(4):
            e.ds(f"ds_read_b128 {vr(R+16*w+4*a,4)}, v{T+9} offset:{4096*w+1024*a}")
        if w % 2 == 1:
            e.wait(ds=e.ds_n)
    for i in range(8):
        e(f"v_pk_add_f32 {vr(R+2*i,2)}, {vr(R+2*i,2)}, {vr(R+16+2*i,2)}")
        e(f"v_pk_add_f32 {vr(R+32+2*i,2)}, {vr(R+32+2*i,2)}, {vr(R+48+2*i,2)}")
    for i in range(8):
        e(f"v_pk_add_f32 {vr(R+2*i,2)}, {vr(R+2*i,2)}, {vr(R+32+2*i,2)}")
    for i in range(8):
        e(f"v_mul_f32 v{R+16+i}, {f32bits(-math.log2(math.e)):#x}, v{R+i}")
    for i in range(8):
        e(f"v_exp_f32 v{R+16+i}, v{R+16+i}")
    for i in range(8):
        e(f"v_add_f32 v{R+16+i}, 1.0, v{R+16+i}")
    for i in range(8):
        e(f"v_rcp_f32 v{R+16+i}, v{R+16+i}")
    for i in range(8):
        e(f"v_mul_f32 v{R+i}, v{R+i}, v{R+8+i}")
    for i in range(8):
        e(f"v_mul_f32 v{R+i}, v{R+i}, v{R+16+i}")
    for i in range(4):
        e(f"v_cvt_pk_bf16_f32 v{XF+i}, v{R+2*i}, v{R+2*i+1}")
    e(f"v_lshrrev_b32 v{T+8}, 1, v{V_G}")
    e(f"v_mul_u32_u24 v{T+8}, {144*256}, v{T+8}")
    e(f"v_and_b32 v{T+9}, 1, v{V_G}")
    e(f"v_lshl_add_u32 v{T+8}, v{T+9}, 4, v{T+8}")
    e(f"v_lshl_add_u32 v{T+8}, v{V_C}, 5, v{T+8}")
    e(f"v_cmp_gt_u32 vcc, 8, v{V_C}")
    e(f"v_mov_b32 v{T+9}, {OOB}")
    e(f"s_mul_i32 s34, s32, {18*144*256}")
    e(f"v_cndmask_b32 v{T+8}, v{T+9}, v{T+8}, vcc")
    e("s_lshl_b32 s35, s2, 8")
    e("s_add_u32 s34, s34, s35")
    e(f"s_add_u32 s34, s34, {WS_PART}")
    Y = KEY
    for j in range(9):
        e(f"v_mfma_f32_16x16x32_bf16 {vr(Y+4*j,4)}, {vr(DF+4*j,4)}, {vr(XF,4)}, 0")
    e.nop(8)
    for j in range(9):
        e.vm(f"buffer_store_dwordx4 {vr(Y+4*j,4)}, v{T+8}, s[16:19], s34 offen")
        e(f"s_add_u32 s34, s34, {2*144*256}")
    e.label("L_k3_end")
    e("s_endpgm")
    return kernel_head(NAME3) + e.text(), descriptor(NAME3, 232, 232)


def gen4():
    e = Emit()
    T = 4
    P = 16
    e("s_cmp_ge_u32 s2, 72")
    e("s_cbranch_scc1 L_k4_end")
    e("s_load_dwordx2 s[8:9], s[0:1], 80")
    e("s_load_dwordx2 s[10:11], s[0:1], 96")
    code_prefetch(e, "L_k4_end", T, T + 11, "k4")
    e(f"v_lshlrev_b32 v{T}, 4, v0")
    e(f"v_bfe_u32 v{T+1}, v0, 1, 3")
    e(f"v_lshlrev_b32 v{T+1}, 2, v{T+1}")
    e(f"s_mul_i32 s34, s2, {144*256}")
    e(f"s_add_u32 s34, s34, {WS_PART}")
    e(f"s_mov_b32 s35, {WS_SEL}")
    e("s_waitcnt lgkmcnt(0)")
    e.srd(16, 10, WS_BYTES)
    e.srd(20, 8, X_BYTES)
    ktok = e.vm(f"buffer_load_dword v{T+2}, v{T+1}, s[16:19], s35 offen")
    for i in range(9):
        ptok = e.vm(f"buffer_load_dwordx4 {vr(P+4*i,4)}, v{T}, s[16:19], s34 offen")
        e("s_add_u32 s34, s34, 4096")
    e.wait(vm=ktok)
    e(f"v_and_b32 v{T+3}, 0x7ff, v{T+2}")
    e(f"v_mul_u32_u24 v{T+3}, 1152, v{T+3}")
    e(f"v_and_b32 v{T+4}, 1, v0")
    e(f"v_lshl_add_u32 v{T+3}, v{T+4}, 3, v{T+3}")
    e("s_lshl_b32 s35, s2, 4")
    otok = e.vm(f"buffer_load_dwordx2 {vr(T+6,2)}, v{T+3}, s[20:23], s35 offen")
    e(f"v_and_b32 v{T+2}, 0xfffff800, v{T+2}")
    e(f"v_or_b32 v{T+2}, 0x400, v{T+2}")
    e(f"v_ashrrev_i32 v{T+4}, 31, v{T+2}")
    e(f"v_not_b32 v{T+4}, v{T+4}")
    e(f"v_or_b32 v{T+4}, 0x80000000, v{T+4}")
    e(f"v_xor_b32 v{T+2}, v{T+2}, v{T+4}")
    e(f"v_mul_f32 v{T+2}, {f32bits(-math.log2(math.e)):#x}, v{T+2}")
    e(f"v_exp_f32 v{T+2}, v{T+2}")
    e.nop(1)
    e(f"v_add_f32 v{T+2}, 1.0, v{T+2}")
    e(f"v_rcp_f32 v{T+2}, v{T+2}")
    e.wait(vm=ptok)
    for i in range(1, 9):
        for h in range(2):
            e(f"v_pk_add_f32 {vr(P+2*h,2)}, {vr(P+2*h,2)}, {vr(P+4*i+2*h,2)}")
    e.ds(f"ds_write_b128 v{T}, {vr(P,4)}")
    e(f"v_and_b32 v{T+5}, 0xf0, v{T}")
    e.wait(ds=e.ds_n)
    e("s_barrier")
    e("v_cmp_gt_u32 vcc, 16, v0")
    e("s_and_saveexec_b64 s[36:37], vcc")
    e("s_cbranch_execz L_k4_end")
    for i in range(16):
        e.ds(f"ds_read_b128 {vr(P+4*i,4)}, v{T+5} offset:{256*i}")
        if i % 8 == 7:
            e.wait(ds=e.ds_n)
    for i in range(1, 16):
        for h in range(2):
            e(f"v_pk_add_f32 {vr(P+2*h,2)}, {vr(P+2*h,2)}, {vr(P+4*i+2*h,2)}")
    e.wait(vm=otok)
    e(f"v_lshlrev_b32 v{P+4}, 16, v{T+6}")
    e(f"v_and_b32 v{P+5}, 0xffff0000, v{T+6}")
    e(f"v_lshlrev_b32 v{P+6}, 16, v{T+7}")
    e(f"v_and_b32 v{P+7}, 0xffff0000, v{T+7}")
    for i in range(4):
        e(f"v_fma_f32 v{P+i}, v{P+i}, v{T+2}, v{P+4+i}")
    e(f"v_cvt_pk_bf16_f32 v{P}, v{P}, v{P+1}")
    e(f"v_cvt_pk_bf16_f32 v{P+1}, v{P+2}, v{P+3}")
    e.vm(f"buffer_store_dwordx2 {vr(P,2)}, v{T+3}, s[20:23], s35 offen")
    e.label("L_k4_end")
    e("s_endpgm")
    return kernel_head(NAME4) + e.text(), descriptor(NAME4, 96, 96)
```

```python
import math
X_BYTES = 2048 * 576 * 2
WQ_BYTES = 576 * 576 * 2
WK_BYTES = 576 * 18 * 2
WF_BYTES = 576 * 4608 * 2
QSCALE = (18 ** -0.5) * math.log2(math.e)
MOFF = 32.0
MCONST = 0x0000C200
WS_Q = 0
WS_K1 = 0x240000
WS_K2 = WS_K1 + 0x10000
WS_V = WS_K2 + 0x4000
WS_MC = WS_V + 0x13000
WS_WO = WS_MC + 0x1000
WS_HN = WS_WO + 0xA2000
WS_R = WS_HN + 0x240000
WS_SEL = WS_R + 0x10000
WS_PART = WS_SEL + 0x1000
WS_DUMP = WS_PART + 0x300000
WS_BYTES = 0x1000000
OOB = 0x7F000000
assert WS_DUMP + 0x20000 <= WS_BYTES
```

```python
import sys, os
sys.path.insert(0, os.path.dirname(os.path.abspath(__file__)))
import k1, k2, k3

REF = "sequential_preLN__grouped_kv_mqa__moe_arch_mod__prompt.s.ref"
OUT = "sequential_preLN__grouped_kv_mqa__moe_arch_mod__prompt.s"

def build(extra_launch=0):
    head = [l for l in open(REF).read().split("\n") if l.startswith(";") and "@launch" not in l and "Override launch" not in l and "grid=ceil" not in l]
    ks = [(k1.NAME, k1.gen(), 256, k1.LDS), (k2.NAME, k2.gen(), 256, k2.LDS),
          (k3.NAME3, k3.gen3(), 144, k3.LDS3), (k3.NAME4, k3.gen4(), 72, k3.LDS4)]
    for n, _, g, lds in ks:
        head.append(f"; @launch kernel={n} grid=({g},1,1) block=(256,1,1) lds={lds}")
    s = "\n".join(head) + '\n.amdgcn_target "amdgcn-amd-amdhsa--gfx950"\n.text\n'
    for _, (code, _), _, _ in ks:
        s += code
    s += '.section .rodata,"a"\n'
    for _, (_, d), _, _ in ks:
        s += ".p2align 6\n" + d
    return s

if __name__ == "__main__":
    out = sys.argv[1] if len(sys.argv) > 1 else OUT
    open(out, "w").write(build())
    print("written", out)
```

```python
import struct


def f32bits(x):
    return struct.unpack("<I", struct.pack("<f", x))[0]


def vr(a, n=1, p="v"):
    return f"{p}{a}" if n == 1 else f"{p}[{a}:{a+n-1}]"


def ar(a, n=1):
    return vr(a, n, "a")


def sr(a, n=1):
    return vr(a, n, "s")


STAMPS = [False]
OPT = set()


class Emit:
    def __init__(self):
        self.lines = []
        self.vm_n = 0
        self.ds_n = 0
        self.vm_done = 0
        self.ds_done = 0

    def __call__(self, s):
        for l in s.strip("\n").split("\n"):
            l = l.strip()
            if not l:
                continue
            if l.endswith(":") or l.startswith("."):
                self.lines.append(l)
            else:
                self.lines.append("    " + l)

    def label(self, name):
        self.lines.append(name + ":")

    def comment(self, s):
        self.lines.append("    ; " + s)

    def vm(self, s):
        self(s)
        self.vm_n += 1
        assert self.vm_n - self.vm_done <= 63 + 64, "vm bookkeeping"
        return self.vm_n

    def ds(self, s):
        self(s)
        self.ds_n += 1
        return self.ds_n

    def wait_str(self, vm=None, ds=None):
        parts = []
        if vm is not None and vm > self.vm_done:
            n = self.vm_n - vm
            assert n >= 0
            if n <= 63:
                parts.append(f"vmcnt({n})")
                self.vm_done = vm
            else:
                parts.append("vmcnt(63)")
                self.vm_done = max(self.vm_done, self.vm_n - 63)
        if ds is not None and ds > self.ds_done:
            n = self.ds_n - ds
            assert n >= 0
            n = min(n, 15)
            parts.append(f"lgkmcnt({n})")
            self.ds_done = self.ds_n - n
        return ("s_waitcnt " + " ".join(parts)) if parts else None

    def wait(self, vm=None, ds=None):
        s = self.wait_str(vm, ds)
        if s:
            self(s)
        return s is not None

    def wait_all(self):
        self("s_waitcnt vmcnt(0) lgkmcnt(0)")
        self.vm_done = self.vm_n
        self.ds_done = self.ds_n

    def fork(self):
        return (self.vm_n, self.ds_n, self.vm_done, self.ds_done)

    def restore(self, st):
        self.vm_n, self.ds_n, self.vm_done, self.ds_done = st

    def nop(self, n):
        while n > 0:
            k = min(n, 16)
            self(f"s_nop {k-1}")
            n -= k

    def srd(self, d, base, size):
        self(f"s_mov_b32 s{d}, s{base}")
        self(f"s_mov_b32 s{d+1}, s{base+1}")
        self(f"s_mov_b32 s{d+2}, {size}")
        self(f"s_mov_b32 s{d+3}, 0x20000")

    def stamp(self, i):
        if STAMPS[0]:
            self(f"s_memrealtime s[{76+2*i}:{77+2*i}]")

    def stamp_flush(self, kid, srd, wave_s, n, off, sh=3):
        if not STAMPS[0]:
            return
        self("s_mov_b64 exec, -1")
        self("s_waitcnt vmcnt(0)")
        self.stamp(n - 1)
        self("s_waitcnt lgkmcnt(0)")
        self(f"s_lshl_b32 s74, s2, {sh}")
        self(f"s_add_u32 s74, s74, s{wave_s}")
        self("s_lshl_b32 s74, s74, 6")
        self(f"s_add_u32 s74, s74, {off + kid*131072}")
        self("s_mov_b64 exec, 1")
        self("v_mov_b32 v1, 0")
        for i in range(n):
            self(f"v_mov_b32 v2, s{76+2*i}")
            self(f"buffer_store_dword v2, v1, s[{srd}:{srd+3}], s74 offen offset:{4*i}")

    def text(self):
        return "\n".join(self.lines) + "\n"


def descriptor(name, vgpr, accum, sgpr=100):
    return f""".amdhsa_kernel {name}
  .amdhsa_next_free_vgpr {vgpr}
  .amdhsa_next_free_sgpr {sgpr}
  .amdhsa_accum_offset {accum}
  .amdhsa_group_segment_fixed_size 0
  .amdhsa_kernarg_size 104
  .amdhsa_user_sgpr_count 2
  .amdhsa_user_sgpr_kernarg_segment_ptr 1
  .amdhsa_system_sgpr_workgroup_id_x 1
.end_amdhsa_kernel
"""


def kernel_head(name):
    return f""".globl {name}
.p2align 8
.type {name},@function
{name}:
"""
```

```python
from asmlib import *
from layout import *

NAME = "prep_kernel"
THREADS = 512
SLOT = 20480
L_EX = 5 * SLOT
LDS = L_EX + 4 * 3584

V_L, V_C, V_G = 0, 2, 3
V_T = 4
V_ONES = 16
V_SUM = 20
V_GRAM = 24
V_CS = 28
V_ACC = 40
V_F = 64
V_AD = 104
V_WO = 124
V_E = 148
V_PF = 164
NV = 168


def code_prefetch(e, end_label, vtmp, vdst, tag, shift=7):
    e(f"s_getpc_b64 s[40:41]")
    e.label(f"L_{tag}_pc")
    e(f"v_lshlrev_b32 v{vtmp}, {shift}, v0")
    e(f"v_min_u32 v{vtmp}, {end_label}-L_{tag}_pc-4, v{vtmp}")
    return e.vm(f"global_load_dword v{vdst}, v{vtmp}, s[40:41]")


def mfma(d, a, b, first):
    return f"v_mfma_f32_16x16x32_bf16 {vr(d,4)}, {vr(a,4)}, {vr(b,4)}, {'0' if first else vr(d,4)}"


def diag_masks(e):
    t = V_T
    e(f"v_and_b32 v{t}, 3, v{V_C}")
    e(f"v_lshrrev_b32 v{t+1}, 2, v{V_C}")
    e(f"v_cmp_eq_u32 s[44:45], 1, v{t}")
    e(f"v_cmp_eq_u32 s[46:47], 2, v{t}")
    e(f"v_cmp_eq_u32 s[48:49], 3, v{t}")
    e(f"v_cmp_eq_u32 s[50:51], v{V_G}, v{t+1}")


def col_stats(e, dst, scale):
    t, u = V_T, V_T + 1
    e(f"v_cndmask_b32 v{t}, v{V_GRAM}, v{V_GRAM+1}, s[44:45]")
    e(f"v_cndmask_b32 v{t}, v{t}, v{V_GRAM+2}, s[46:47]")
    e(f"v_cndmask_b32 v{t}, v{t}, v{V_GRAM+3}, s[48:49]")
    e(f"v_cndmask_b32 v{t}, 0, v{t}, s[50:51]")
    e(f"v_mov_b32 v{u}, v{t}")
    e(f"v_mul_f32 v{dst}, {f32bits(1.0/576):#x}, v{V_SUM}")
    e.nop(1)
    e(f"v_permlane16_swap_b32 v{u}, v{t}")
    e.nop(1)
    e(f"v_add_f32 v{t}, v{t}, v{u}")
    e(f"v_mov_b32 v{u}, v{t}")
    e(f"v_mul_f32 v{t+2}, v{dst}, v{dst}")
    e.nop(1)
    e(f"v_permlane32_swap_b32 v{u}, v{t}")
    e.nop(1)
    e(f"v_add_f32 v{t}, v{t}, v{u}")
    e(f"v_mul_f32 v{t}, {f32bits(1.0/576):#x}, v{t}")
    e(f"v_sub_f32 v{t}, v{t}, v{t+2}")
    e(f"v_max_f32 v{t}, 0, v{t}")
    e(f"v_add_f32 v{t}, {f32bits(1e-5):#x}, v{t}")
    e(f"v_rsq_f32 v{dst+1}, v{t}")
    e.nop(1)
    if scale != 1.0:
        e(f"v_mul_f32 v{dst+1}, {f32bits(scale):#x}, v{dst+1}")


def clear_keys(e):
    t = V_T + 8
    e(f"v_mov_b32 v{t}, -1")
    e(f"v_lshlrev_b32 v{t+1}, 2, v{V_C}")
    e("s_lshl_b32 s70, s2, 2")
    e("s_add_u32 s70, s70, s32")
    e("s_lshl_b32 s70, s70, 6")
    e(f"s_add_u32 s70, s70, {WS_R}")
    e.vm(f"buffer_store_dword v{t}, v{t+1}, s[24:27], s70 offen")


def q_loader(e):
    t = V_T
    A = V_AD
    for j in range(2):
        e(f"v_lshrrev_b32 v{t}, 3, v{V_L}")
        e(f"v_add_u32 v{t}, {8*j}, v{t}")
        e(f"v_mul_u32_u24 v{t}, 1152, v{t}")
        e(f"v_and_b32 v{t+1}, 7, v{V_L}")
        e(f"v_add_u32 v{t+2}, {4*j}, v{V_G}")
        e(f"v_xor_b32 v{t+1}, v{t+1}, v{t+2}")
        e(f"v_lshl_add_u32 v{A+j}, v{t+1}, 4, v{t}")
    for j in range(3):
        for l in range(64):
            i = 64 * j + l
            assert (i * 171) >> 11 == i // 12
        e(f"v_add_u32 v{t}, {64*j}, v{V_L}")
        e(f"v_mul_u32_u24 v{t+1}, 171, v{t}")
        e(f"v_lshrrev_b32 v{t+1}, 11, v{t+1}")
        e(f"v_mul_u32_u24 v{t+2}, 12, v{t+1}")
        e(f"v_sub_u32 v{t+2}, v{t}, v{t+2}")
        e(f"v_lshrrev_b32 v{t+3}, 2, v{t+1}")
        e(f"v_and_b32 v{t+3}, 2, v{t+3}")
        e(f"v_xor_b32 v{t+2}, v{t+2}, v{t+3}")
        e(f"v_mul_u32_u24 v{t+1}, 1152, v{t+1}")
        e(f"v_lshl_add_u32 v{A+2+j}, v{t+2}, 4, v{t+1}")
    e("s_lshl_b32 s37, s33, 2")
    e("s_add_u32 s37, s37, s35")
    e("s_lshl_b32 s37, s37, 2")
    e("s_add_u32 s37, s37, s32")
    e("s_mul_i32 s37, s37, 18432")
    e("s_mul_i32 s38, s36, 192")
    e("s_mul_i32 s39, s32, 18432")
    e("s_add_u32 s38, s38, s39")
    e("s_mul_i32 s42, s36, 3")
    e("s_add_u32 s42, s42, 1")
    e("s_lshr_b32 s42, s42, 1")
    e("s_lshl_b32 s43, s35, 1")
    e("s_add_u32 s42, s42, s43")
    e("s_sub_u32 s43, s42, 9")
    e("s_cmp_ge_u32 s42, 9")
    e("s_cselect_b32 s42, s43, s42")
    e("s_lshl_b32 s52, s32, 11")
    e("s_mul_i32 s53, s32, 3072")
    e("s_add_u32 s53, s53, 8192")
    e("s_waitcnt lgkmcnt(0)")
    e.stamp(1)
    e.srd(16, 4, X_BYTES)
    e.srd(20, 6, WQ_BYTES)
    tok = []

    def issue(u):
        e("s_lshl_b32 s54, s42, 7")
        e("s_add_u32 s54, s54, s37")
        e(f"s_mul_i32 s55, s42, {64*1152}")
        e("s_add_u32 s55, s55, s38")
        base = (u % 5) * SLOT
        extra = ["s_add_u32 s42, s42, 1", "s_cmp_eq_u32 s42, 9", "s_cselect_b32 s42, 0, s42"]
        for j in range(5):
            if j < 2:
                e(f"s_add_u32 m0, s52, {base + 1024*j}")
            else:
                e(f"s_add_u32 m0, s53, {base + 1024*(j-2)}")
            e.nop(1)
            if j < 2:
                tk = e.vm(f"buffer_load_dwordx4 v{A+j}, s[16:19], s54 offen lds")
            else:
                tk = e.vm(f"buffer_load_dwordx4 v{A+j}, s[20:23], s55 offen lds")
        for x in extra:
            e(x)
        tok.append(tk)
    for u in range(3):
        issue(u)
    e.stamp(2)
    for u in range(9):
        e.wait(vm=tok[u])
        e("s_barrier")
        if u == 0:
            e.stamp(3)
        if u + 3 < 9:
            issue(u + 3)
    if STAMPS[0]:
        e.srd(24, 14, WS_BYTES)
        e("s_add_u32 s32, s32, 4")
        e.stamp_flush(0, 24, 32, 5, WS_STAMP, 3)
    e("s_endpgm")


def q_compute(e):
    t = V_T
    A = V_AD
    e("s_lshr_b32 s37, s32, 1")
    e("s_and_b32 s38, s32, 1")
    e(f"v_lshrrev_b32 v{t}, 1, v{V_C}")
    e(f"v_xor_b32 v{t}, v{t}, v{V_G}")
    e(f"v_lshlrev_b32 v{t}, 4, v{t}")
    e(f"v_lshl_add_u32 v{t}, v{V_C}, 7, v{t}")
    e("s_lshl_b32 s39, s37, 6")
    e(f"v_xor_b32 v{t}, s39, v{t}")
    e("s_lshl_b32 s39, s37, 12")
    e("s_lshl_b32 s42, s38, 11")
    e("s_add_u32 s39, s39, s42")
    e(f"v_add_u32 v{A}, s39, v{t}")
    e(f"v_xor_b32 v{A+1}, 64, v{A}")
    e(f"v_xor_b32 v{A+2}, 0x800, v{A}")
    e(f"v_xor_b32 v{A+3}, 0x800, v{A+1}")
    e(f"v_lshrrev_b32 v{t}, 2, v{V_C}")
    e(f"v_lshl_add_u32 v{t}, v{V_G}, 3, v{t}")
    e(f"v_mul_u32_u24 v{t}, 192, v{t}")
    e(f"v_and_b32 v{t+1}, 3, v{V_C}")
    e(f"v_lshl_add_u32 v{t}, v{t+1}, 3, v{t}")
    e(f"v_and_b32 v{t+1}, 1, v{V_G}")
    e("s_mul_i32 s39, s37, 6144")
    e("s_add_u32 s42, s39, 8192")
    e("s_sub_u32 s43, 14336, s39")
    e("s_mul_i32 s39, s38, 3")
    for tl in range(3):
        e(f"s_add_u32 s52, s39, {tl}")
        e(f"v_xor_b32 v{t+2}, s52, v{t+1}")
        e(f"v_lshl_add_u32 v{t+2}, v{t+2}, 5, v{t}")
        e(f"v_add_u32 v{A+4+tl}, s42, v{t+2}")
        e(f"v_add_u32 v{A+7+tl}, s43, v{t+2}")
    for i in range(10):
        e(f"v_add_u32 v{A+10+i}, {3*SLOT}, v{A+i}")
    diag_masks(e)
    for i in range(4):
        e(f"v_mov_b32 v{V_ONES+i}, 0x3f803f80")
    e(f"v_lshlrev_b32 v{V_E}, 4, v{V_L}")
    e("s_mul_i32 s39, s32, 3584")
    e(f"s_add_u32 s39, s39, {L_EX}")
    e(f"v_add_u32 v{V_E+1}, s39, v{V_E}")
    e("s_xor_b32 s42, s32, 2")
    e("s_mul_i32 s42, s42, 3584")
    e(f"s_add_u32 s42, s42, {L_EX}")
    e(f"v_add_u32 v{V_E+2}, s42, v{V_E}")
    e(f"v_lshlrev_b32 v{V_E}, 3, v{V_L}")
    e(f"v_add_u32 v{V_E+3}, s39, v{V_E}")
    e("s_xor_b32 s42, s32, 1")
    e("s_mul_i32 s42, s42, 3584")
    e(f"s_add_u32 s42, s42, {L_EX}")
    e(f"v_add_u32 v{V_E+4}, s42, v{V_E}")
    e(f"v_lshrrev_b32 v{t}, 3, v{V_C}")
    e(f"v_mul_u32_u24 v{t}, 9216, v{t}")
    e(f"v_lshl_add_u32 v{t}, v{V_G}, 6, v{t}")
    e(f"v_and_b32 v{t+1}, 7, v{V_C}")
    e(f"v_lshl_add_u32 v{V_E+5}, v{t+1}, 3, v{t}")
    e("s_lshl_b32 s39, s33, 2")
    e("s_add_u32 s39, s39, s35")
    e("s_lshl_b32 s39, s39, 2")
    e("s_add_u32 s39, s39, s32")
    e("s_xor_b32 s42, s39, 1")
    e("s_mul_i32 s52, s36, 2")
    e("s_add_u32 s52, s52, s38")
    e("s_mul_i32 s52, s52, 768")
    e(f"s_add_u32 s52, s52, {WS_Q}")
    e("s_mul_i32 s39, s39, 18432")
    e("s_mul_i32 s42, s42, 18432")
    e("s_add_u32 s54, s39, s52")
    e("s_add_u32 s55, s42, s52")
    e("s_waitcnt lgkmcnt(0)")
    e.stamp(1)
    e.srd(24, 14, WS_BYTES)
    clear_keys(e)

    rt = {}

    def F(s, name):
        b = V_F + 20 * (s & 1)
        return b + {"x0": 0, "x1": 4, "w0": 8, "w1": 12, "w2": 16}[name]

    def read_ops(s):
        u, b = divmod(s, 2)
        sl = u % 5
        hi = 10 if sl >= 3 else 0
        off = (sl - (3 if hi else 0)) * SLOT
        ops = []

        def rx(a):
            def f():
                rt[(s, f"x{a}")] = e.ds(f"ds_read_b128 {vr(F(s,f'x{a}'),4)}, v{A+hi+2*a+b} offset:{off}")
            return f

        def rw(tl, half):
            def f():
                rt[(s, f"w{tl}")] = e.ds(f"ds_read_b64_tr_b16 {vr(F(s,f'w{tl}')+2*half,2)}, v{A+hi+4+3*b+tl} offset:{off+768*half}")
            return f
        return [rx(0), rw(0, 0), rw(0, 1), rx(1), rw(1, 0), rw(1, 1), rw(2, 0), rw(2, 1)]

    e("s_barrier")
    e.stamp(2)
    for f in read_ops(0):
        f()
    for s in range(18):
        b = s & 1
        if b == 1 and s < 17:
            e("s_barrier")
        nxt = read_ops(s + 1) if s < 17 else []
        f0 = s == 0
        ms = [(["x0"], mfma(V_SUM, V_ONES, F(s, "x0"), f0)),
              (["x0"], mfma(V_GRAM, F(s, "x0"), F(s, "x0"), f0))]
        for tl in range(3):
            w = F(s, f"w{tl}")
            ms.append(([f"w{tl}", "x0"], mfma(V_ACC + 4 * tl, w, F(s, "x0"), f0)))
            if b == 0:
                ms.append(([f"w{tl}"], mfma(V_CS + 4 * tl, w, V_ONES, f0)))
            ms.append(([f"w{tl}", "x1"], mfma(V_ACC + 12 + 4 * tl, w, F(s, "x1"), f0)))
        for i, (need, m) in enumerate(ms):
            e.wait(ds=max(rt[(s, n)] for n in need))
            if not ("nomfma" in OPT or ("nostat" in OPT and (i < 2 or len(need) == 1))):
                e(m)
            if i < len(nxt):
                if "noread" in OPT:
                    n0 = len(e.lines); nxt[i](); del e.lines[n0:]
                else:
                    nxt[i]()
    e.stamp(3)
    for tl in range(3):
        e.ds(f"ds_write_b128 v{V_E+1}, {vr(V_CS+4*tl,4)} offset:{1024*tl}")
    st = V_E + 6
    col_stats(e, st, QSCALE)
    e.ds(f"ds_write_b64 v{V_E+3}, {vr(st,2)} offset:3072")
    e.wait(ds=e.ds_n)
    e("s_barrier")
    P = V_F
    tk = []
    for tl in range(3):
        tk.append(e.ds(f"ds_read_b128 {vr(P+4*tl,4)}, v{V_E+2} offset:{1024*tl}"))
    tk.append(e.ds(f"ds_read_b64 {vr(st+2,2)}, v{V_E+4} offset:3072"))
    for a in range(2):
        for tl in range(3):
            e.wait(ds=tk[tl] if a == 0 else tk[3])
            acc = V_ACC + 12 * a + 4 * tl
            for h in range(2):
                cs = V_CS + 4 * tl + 2 * h
                if a == 0:
                    e(f"v_pk_add_f32 {vr(cs,2)}, {vr(cs,2)}, {vr(P+4*tl+2*h,2)}")
            for h in range(2):
                cs = V_CS + 4 * tl + 2 * h
                e(f"v_pk_fma_f32 {vr(acc+2*h,2)}, {vr(cs,2)}, {vr(st+2*a,2)}, {vr(acc+2*h,2)} op_sel_hi:[1,0,1] neg_lo:[1,0,0] neg_hi:[1,0,0]")
            for h in range(2):
                e(f"v_pk_mul_f32 {vr(acc+2*h,2)}, {vr(acc+2*h,2)}, {vr(st+2*a,2)} op_sel:[0,1] op_sel_hi:[1,1]")
            e(f"v_cvt_pk_bf16_f32 v{acc}, v{acc}, v{acc+1}")
            e(f"v_cvt_pk_bf16_f32 v{acc+1}, v{acc+2}, v{acc+3}")
            e.vm(f"buffer_store_dwordx2 {vr(acc,2)}, v{V_E+5}, s[24:27], s{54+a} offen offset:{256*tl}{ST_FLAG}")
    e.stamp(4)
    e.stamp_flush(0, 24, 32, 6, WS_STAMP, 3)
    e("s_endpgm")


L_KX = 0
L_KW = 36864


def kv_loader(e):
    t = V_T
    A = V_AD
    e(f"v_lshrrev_b32 v{t}, 3, v{V_L}")
    e(f"v_mul_u32_u24 v{t}, 1152, v{t}")
    e(f"v_and_b32 v{t+1}, 7, v{V_L}")
    e("s_and_b32 s35, s32, 1")
    e("s_lshr_b32 s36, s32, 1")
    e("s_lshl_b32 s37, s35, 2")
    e(f"v_add_u32 v{t+2}, s37, v{V_G}")
    e(f"v_xor_b32 v{t+1}, v{t+1}, v{t+2}")
    e(f"v_lshl_add_u32 v{A}, v{t+1}, 4, v{t}")
    for j in range(3):
        for l in range(64):
            i = 64 * j + l
            assert (i * 171) >> 9 == i // 3
        e(f"v_add_u32 v{t}, {64*j}, v{V_L}")
        e(f"v_mul_u32_u24 v{t+1}, 171, v{t}")
        e(f"v_lshrrev_b32 v{t+1}, 9, v{t+1}")
        e(f"v_mul_u32_u24 v{t+2}, 3, v{t+1}")
        e(f"v_sub_u32 v{t+2}, v{t}, v{t+2}")
        e(f"v_mul_u32_u24 v{t+1}, 36, v{t+1}")
        e(f"v_lshl_add_u32 v{A+1+j}, v{t+2}, 4, v{t+1}")
    e("s_lshl_b32 s37, s53, 2")
    e("s_add_u32 s37, s37, s32")
    e("s_mul_i32 s37, s37, 9216")
    e("s_lshl_b32 s52, s32, 10")
    e("s_mul_i32 s54, s35, 30720")
    e("s_mul_i32 s55, s36, 3072")
    e("s_add_u32 s54, s54, s55")
    e(f"s_add_u32 s54, s54, {L_KW}")
    e("s_mov_b32 s42, s34")
    e("s_waitcnt lgkmcnt(0)")
    e.stamp(1)
    e.srd(16, 4, X_BYTES)
    e("s_cmp_eq_u32 s35, 0")
    e("s_cselect_b32 s20, s8, s10")
    e("s_cselect_b32 s21, s9, s11")
    e(f"s_mov_b32 s22, {WK_BYTES}")
    e("s_mov_b32 s23, 0x20000")
    tok = []

    def issue(i):
        e("s_add_u32 s43, s42, 1")
        e("s_cmp_eq_u32 s43, 9")
        e("s_cselect_b32 s43, 0, s43")
        e("s_cmp_eq_u32 s36, 0")
        e("s_cselect_b32 s55, s42, s43")
        e("s_mul_i32 s55, s55, 2304")
        for q in range(2):
            if 2 * i + q < 9:
                e(f"s_lshl_b32 s56, s{42+q}, 7")
                e(f"s_add_u32 m0, s52, {L_KX + 4096*(2*i+q)}")
                e("s_add_u32 s56, s56, s37")
                e.vm(f"buffer_load_dwordx4 v{A}, s[16:19], s56 offen lds")
        for j in range(3):
            e(f"s_add_u32 m0, s54, {6144*i + 1024*j}")
            e.nop(1)
            tk = e.vm(f"buffer_load_dwordx4 v{A+1+j}, s[20:23], s55 offen lds")
        e("s_add_u32 s42, s43, 1")
        e("s_cmp_eq_u32 s42, 9")
        e("s_cselect_b32 s42, 0, s42")
        tok.append(tk)
    for i in range(3):
        issue(i)
    e.stamp(2)
    for i in range(5):
        e.wait(vm=tok[i])
        e("s_barrier")
        if i == 0:
            e.stamp(3)
        if i + 3 < 5:
            issue(i + 3)
    if STAMPS[0]:
        e.srd(24, 14, WS_BYTES)
        e("s_add_u32 s32, s32, 4")
        e.stamp_flush(0, 24, 32, 5, WS_STAMP, 3)
    e("s_endpgm")


def wo_gather(e):
    t = V_T
    S = V_E + 8
    e(f"v_lshlrev_b32 v{S}, 1, v{V_L}")
    e(f"v_and_b32 v{t}, 7, v{V_L}")
    e(f"v_lshlrev_b32 v{t}, 11, v{t}")
    e(f"v_lshrrev_b32 v{t+1}, 3, v{V_L}")
    e(f"v_lshl_add_u32 v{S+1}, v{t+1}, 4, v{t}")
    e(f"v_mul_u32_u24 v{t}, {9*2048}, v{V_G}")
    e(f"v_lshl_add_u32 v{S+2}, v{V_C}, 4, v{t}")
    e("s_lshl_b32 s54, s53, 2")
    e("s_add_u32 s54, s54, s32")
    e("s_waitcnt lgkmcnt(0)")
    e.stamp(1)
    e.srd(28, 12, WQ_BYTES)
    e.srd(24, 14, WS_BYTES)
    gtok = []
    for p in range(3):
        for ch in range(768):
            assert (ch * 7282) >> 16 == ch // 9
        e(f"s_add_u32 s55, s54, {256*p}")
        e("s_mul_i32 s56, s55, 7282")
        e("s_lshr_b32 s56, s56, 16")
        e("s_mul_i32 s57, s56, 9")
        e("s_sub_u32 s57, s55, s57")
        e("s_lshr_b32 s58, s56, 3")
        e("s_bfe_u32 s59, s56, 0x10002")
        e("s_bfe_u32 s60, s56, 0x10001")
        e("s_and_b32 s61, s56, 1")
        e("s_mul_i32 s62, s58, 72")
        e("s_lshl_b32 s63, s59, 3")
        e("s_add_u32 s62, s62, s63")
        e("s_lshl_b32 s63, s61, 2")
        e("s_add_u32 s62, s62, s63")
        e("s_mul_i32 s63, s61, 288")
        e("s_add_u32 s63, s63, s59")
        e("s_add_u32 s63, s63, 16")
        e("s_cmp_ge_u32 s58, 8")
        e("s_cselect_b32 s62, s63, s62")
        e(f"s_cselect_b32 s63, 72, 1")
        e(f"s_mul_i32 s63, s63, 1152")
        e("s_mul_i32 s64, s60, 36")
        e("s_add_u32 s62, s62, s64")
        e("s_mul_i32 s62, s62, 1152")
        e("s_lshl_b32 s64, s57, 7")
        e("s_add_u32 s62, s62, s64")
        for jj in range(4):
            for pp in range(2):
                s8 = 4 * (jj // 2) + 2 * pp + (jj % 2)
                if pp == 1:
                    e(f"s_add_u32 s64, s62, {18*1152}")
                tk = e.vm(f"buffer_load_ushort v{V_WO+8*p+s8}, v{S}, s[28:31], {'s64' if pp else 's62'} offen")
            if jj < 3:
                e("s_add_u32 s62, s62, s63")
        gtok.append(tk)
        e("s_mul_i32 s62, s58, 36")
        e("s_lshr_b32 s63, s57, 1")
        e("s_mul_i32 s63, s63, 9")
        e("s_cmp_eq_u32 s57, 8")
        e("s_cselect_b32 s63, 8, s63")
        e(f"s_cselect_b64 vcc, -1, 0")
        e(f"v_cndmask_b32 v{S+3+p}, v{S+1}, v{S+2}, vcc")
        e("s_add_u32 s62, s62, s63")
        e("s_lshl_b32 s62, s62, 11")
        e("s_and_b32 s63, s56, 7")
        e("s_lshl_b32 s63, s63, 8")
        e("s_add_u32 s62, s62, s63")
        e("s_and_b32 s63, s57, 1")
        e("s_lshl_b32 s63, s63, 7")
        e("s_add_u32 s62, s62, s63")
        e(f"s_add_u32 s62, s62, {WS_WO}")
        e("s_cmp_ge_u32 s55, 648")
        e(f"s_cselect_b32 s{66+p}, {WS_DUMP}, s62")
    return gtok


def wo_store(e, gtok):
    S = V_E + 8
    for p in range(3):
        e.wait(vm=gtok[p])
        b = V_WO + 8 * p
        for i in range(4):
            e(f"v_lshl_or_b32 v{b+i}, v{b+2*i+1}, 16, v{b+2*i}")
        e.vm(f"buffer_store_dwordx4 {vr(b,4)}, v{S+3+p}, s[24:27], s{66+p} offen{ST_FLAG}")


def kv_compute(e):
    t = V_T
    A = V_AD
    gtok = wo_gather(e)
    clear_keys(e)
    e("s_and_b32 s35, s32, 1")
    e("s_lshr_b32 s36, s32, 1")
    e("s_lshl_b32 s38, s53, 1")
    e("s_add_u32 s38, s38, s36")
    e(f"v_lshrrev_b32 v{t}, 1, v{V_C}")
    e(f"v_xor_b32 v{t}, v{t}, v{V_G}")
    e(f"v_lshlrev_b32 v{t}, 4, v{t}")
    e(f"v_lshl_add_u32 v{t}, v{V_C}, 7, v{t}")
    e("s_lshl_b32 s39, s36, 11")
    e(f"v_add_u32 v{A}, s39, v{t}")
    e(f"v_xor_b32 v{A+1}, 64, v{A}")
    e(f"v_lshrrev_b32 v{t}, 2, v{V_C}")
    e(f"v_lshl_add_u32 v{t}, v{V_G}, 3, v{t}")
    e(f"v_mul_u32_u24 v{t}, 48, v{t}")
    e(f"v_and_b32 v{t+1}, 3, v{V_C}")
    e(f"v_lshl_add_u32 v{t}, v{t+1}, 3, v{t}")
    e("s_mul_i32 s39, s35, 30720")
    e(f"s_add_u32 s39, s39, {L_KW}")
    e(f"v_add_u32 v{A+2}, s39, v{t}")
    diag_masks(e)
    for i in range(4):
        e(f"v_mov_b32 v{V_ONES+i}, 0x3f803f80")
    e("s_cmp_eq_u32 s35, 1")
    e("s_cbranch_scc1 L_k1_v")
    st1 = e.fork()
    for mat in range(2):
        if mat == 1:
            e.restore(st1)
            e.label("L_k1_v")
        rt = {}

        def F(s, name):
            return V_F + 12 * (s & 1) + {"x": 0, "w0": 4, "w1": 8}[name]

        def read_ops(s):
            u, b = divmod(s, 2)

            def rx():
                rt[(s, "x")] = e.ds(f"ds_read_b128 {vr(F(s,'x'),4)}, v{A+b} offset:{L_KX + 4096*u}")

            def rw(nt, half):
                def f():
                    rt[(s, f"w{nt}")] = e.ds(f"ds_read_b64_tr_b16 {vr(F(s,f'w{nt}')+2*half,2)}, v{A+2} offset:{1536*s + 192*half + 32*nt}")
                return f
            return [rx, rw(0, 0), rw(0, 1), rw(1, 0), rw(1, 1)]
        e("s_barrier")
        e.stamp(2)
        for f in read_ops(0):
            f()
        for s in range(18):
            if s % 4 == 3 and s < 17:
                e("s_barrier")
            nxt = read_ops(s + 1) if s < 17 else []
            f0 = s == 0
            x = F(s, "x")
            sw = (lambda d, w, y: mfma(d, w, y, f0)) if mat == 0 else (lambda d, w, y: mfma(d, y, w, f0))
            ms = [(["x"], sw(V_SUM, V_ONES, x)), (["x"], mfma(V_GRAM, x, x, f0))]
            for nt in range(2):
                w = F(s, f"w{nt}")
                ms.append(([f"w{nt}"], sw(V_CS + 4 * nt, w, V_ONES)))
                ms.append(([f"w{nt}", "x"], sw(V_ACC + 4 * nt, w, x)))
            for i, (need, m) in enumerate(ms):
                e.wait(ds=max(rt[(s, n)] for n in need))
                e(m)
                if i < len(nxt):
                    nxt[i]()
            if s == 7:
                wo_store(e, gtok)
        e.stamp(3)
        a = V_ACC
        E = V_E
        if mat == 0:
            e(f"v_lshrrev_b32 v{E+2}, 1, v{V_G}")
            e(f"v_lshlrev_b32 v{E+2}, 9, v{E+2}")
            e(f"v_and_b32 v{E+3}, 1, v{V_G}")
            e(f"v_lshl_add_u32 v{E+2}, v{E+3}, 2, v{E+2}")
            e(f"v_lshl_add_u32 v{E+2}, v{V_C}, 4, v{E+2}")
            col_stats(e, E, 1.0)
            e("s_lshl_b32 s37, s53, 10")
            e("s_lshl_b32 s42, s36, 8")
            e("s_add_u32 s37, s37, s42")
            e(f"s_add_u32 s37, s37, {WS_K1}")
            e(f"v_lshlrev_b32 v{E+3}, 4, v{V_C}")
            e(f"v_lshl_add_u32 v{E+3}, v{V_G}, 9, v{E+3}")
            e(f"v_mov_b32 v{E+4}, {OOB}")
            e(f"v_cmp_gt_u32 vcc, 2, v{V_G}")
            e("s_lshr_b32 s39, s53, 2")
            e("s_lshl_b32 s39, s39, 10")
            e(f"v_cndmask_b32 v{E+3}, v{E+4}, v{E+3}, vcc")
            e("s_add_u32 s39, s39, s42")
            e("s_and_b32 s42, s53, 3")
            e("s_lshl_b32 s42, s42, 2")
            e("s_add_u32 s39, s39, s42")
            e(f"s_add_u32 s39, s39, {WS_K2}")
            e(f"v_cmp_eq_u32 vcc, 0, v{V_G}")
            for i in range(6):
                e(f"v_fma_f32 v{a+i}, -v{V_CS+i}, v{E}, v{a+i}")
            for i in range(6):
                e(f"v_mul_f32 v{a+i}, v{a+i}, v{E+1}")
            e(f"v_cvt_pk_bf16_f32 v{a}, v{a}, v{a+1}")
            e(f"v_cvt_pk_bf16_f32 v{a+1}, v{a+2}, v{a+3}")
            e(f"v_cvt_pk_bf16_f32 v{a+4}, v{a+4}, v{a+5}")
            e(f"v_mov_b32 v{E+4}, 0x3f80")
            e(f"v_cndmask_b32 v{a+4}, v{E+4}, v{a+4}, vcc")
            e.vm(f"buffer_store_dword v{a}, v{E+2}, s[24:27], s37 offen{ST_FLAG}")
            e.vm(f"buffer_store_dword v{a+1}, v{E+2}, s[24:27], s37 offen offset:8{ST_FLAG}")
            e.vm(f"buffer_store_dword v{a+4}, v{E+3}, s[24:27], s39 offen{ST_FLAG}")
        else:
            e(f"v_lshlrev_b32 v{t}, 2, v{V_G}")
            e(f"v_sub_u32 v{t}, v{V_C}, v{t}")
            for r in range(4):
                e(f"v_cmp_eq_u32 s[{44+2*r}:{45+2*r}], {r}, v{t}")
            e(f"v_and_b32 v{E}, 3, v{V_C}")
            e(f"v_bfe_u32 v{E+1}, v{V_C}, 2, 1")
            for r in range(4):
                e(f"v_cndmask_b32 v{V_GRAM+r}, 0, v{V_GRAM+r}, s[{44+2*r}:{45+2*r}]")
            for sh in (8, 4, 2, 1):
                for r in range(4):
                    e(f"v_add_f32_dpp v{V_GRAM+r}, v{V_GRAM+r}, v{V_GRAM+r} row_ror:{sh} row_mask:0xf bank_mask:0xf")
            for r in range(4):
                e(f"v_mul_f32 v{V_SUM+r}, {f32bits(1.0/576):#x}, v{V_SUM+r}")
            for r in range(4):
                e(f"v_mul_f32 v{V_GRAM+r}, {f32bits(1.0/576):#x}, v{V_GRAM+r}")
            for r in range(4):
                e(f"v_fma_f32 v{V_GRAM+r}, -v{V_SUM+r}, v{V_SUM+r}, v{V_GRAM+r}")
            for r in range(4):
                e(f"v_max_f32 v{V_GRAM+r}, 0, v{V_GRAM+r}")
            for r in range(4):
                e(f"v_add_f32 v{V_GRAM+r}, {f32bits(1e-5):#x}, v{V_GRAM+r}")
            for r in range(4):
                e(f"v_rsq_f32 v{V_GRAM+r}, v{V_GRAM+r}")
            e(f"v_lshl_add_u32 v{E}, v{E+1}, 3, v{E}")
            e(f"v_bfe_u32 v{E+1}, v{V_C}, 3, 1")
            e(f"v_lshl_add_u32 v{E}, v{E+1}, 2, v{E}")
            e(f"v_lshrrev_b32 v{E+1}, 1, v{V_G}")
            e(f"v_mul_u32_u24 v{E+2}, 320, v{E+1}")
            e(f"v_and_b32 v{E+1}, 1, v{V_G}")
            e(f"v_lshl_add_u32 v{E+2}, v{E+1}, 3, v{E+2}")
            e(f"v_lshl_add_u32 v{E}, v{E}, 4, v{E+2}")
            e(f"v_and_b32 v{E+1}, 1, v{V_C}")
            e(f"v_lshl_add_u32 v{E+2}, v{E+1}, 5, v{E+2}")
            e(f"v_bfe_u32 v{E+1}, v{V_C}, 1, 1")
            e(f"v_lshl_add_u32 v{E+2}, v{E+1}, 4, v{E+2}")
            e(f"v_mov_b32 v{E+3}, {OOB}")
            e(f"v_cmp_gt_u32 vcc, 4, v{V_C}")
            e("s_mul_i32 s37, s38, 640")
            e(f"s_add_u32 s37, s37, {WS_V}")
            e(f"v_cndmask_b32 v{E+2}, v{E+3}, v{E+2}, vcc")
            e(f"v_cmp_lt_u32 vcc, 1, v{V_C}")
            for i in range(8):
                e(f"v_fma_f32 v{a+i}, -v{V_CS+i}, v{V_SUM+i%4}, v{a+i}")
            for i in range(8):
                e(f"v_mul_f32 v{a+i}, v{a+i}, v{V_GRAM+i%4}")
            e(f"v_cvt_pk_bf16_f32 v{a}, v{a}, v{a+1}")
            e(f"v_cvt_pk_bf16_f32 v{a+1}, v{a+2}, v{a+3}")
            e(f"v_cvt_pk_bf16_f32 v{a+4}, v{a+4}, v{a+5}")
            e(f"v_cvt_pk_bf16_f32 v{a+5}, v{a+6}, v{a+7}")
            e(f"v_cndmask_b32 v{a+4}, v{a+4}, v{V_ONES}, vcc")
            e(f"v_cndmask_b32 v{a+5}, v{a+5}, v{V_ONES}, vcc")
            e.vm(f"buffer_store_dwordx2 {vr(a,2)}, v{E}, s[24:27], s37 offen{ST_FLAG}")
            e.vm(f"buffer_store_dwordx2 {vr(a+4,2)}, v{E+2}, s[24:27], s37 offen offset:256{ST_FLAG}")
        e.stamp(4)
        e.stamp_flush(0, 24, 32, 6, WS_STAMP, 3)
        e("s_endpgm")


def gen():
    e = Emit()
    e("s_cmp_ge_u32 s2, 256")
    e("s_cbranch_scc1 L_k1_end")
    e.stamp(0)
    e("s_load_dwordx8 s[4:11], s[0:1], 0")
    e("s_load_dwordx2 s[12:13], s[0:1], 32")
    e("s_load_dwordx2 s[14:15], s[0:1], 96")
    code_prefetch(e, "L_k1_end", V_T, V_PF, "k1", 6)
    e(f"v_lshrrev_b32 v1, 6, v0")
    e(f"v_and_b32 v{V_L}, 63, v0")
    e(f"v_readfirstlane_b32 s32, v1")
    e(f"v_and_b32 v{V_C}, 15, v{V_L}")
    e(f"v_lshrrev_b32 v{V_G}, 4, v{V_L}")
    e("s_and_b32 s33, s2, 7")
    e("s_lshr_b32 s34, s2, 3")
    e("s_cmp_ge_u32 s34, 24")
    e("s_cbranch_scc1 L_k1_kv")
    st0 = e.fork()
    e("s_mul_i32 s35, s34, 43")
    e("s_lshr_b32 s35, s35, 8")
    e("s_mul_i32 s36, s35, 6")
    e("s_sub_u32 s36, s34, s36")
    e("s_cmp_lt_u32 s32, 4")
    e("s_cbranch_scc1 L_k1_qc")
    e("s_sub_u32 s32, s32, 4")
    q_loader(e)
    e.restore(st0)
    e.label("L_k1_kv")
    e("s_sub_u32 s34, s34, 24")
    e("s_lshl_b32 s53, s33, 3")
    e("s_add_u32 s53, s53, s34")
    e("s_cmp_lt_u32 s32, 4")
    e("s_cbranch_scc1 L_k1_kvc")
    e("s_sub_u32 s32, s32, 4")
    kv_loader(e)
    e.restore(st0)
    e.label("L_k1_qc")
    q_compute(e)
    e.restore(st0)
    e.label("L_k1_kvc")
    kv_compute(e)
    e.label("L_k1_end")
    e("s_endpgm")
    return kernel_head(NAME) + e.text(), descriptor(NAME, NV, NV)
```

```python
from asmlib import *
from layout import *
from k1 import code_prefetch

NAME = "attn_kernel"

A_K1, A_K2, A_V = 0, 64, 80
A_O = (208, 224)
A_Q1 = (240, 244)
A_Q2 = (248, 252)
V_L = 0
V_XO = 1
V_IPV, V_IWO = 2, 3
V_Q1O, V_Q2O, V_WOO = 4, 5, 6
V_Q1B = 255
V_PW, V_PW2, V_PR1, V_PR2, V_AW, V_L16 = 7, 8, 9, 10, 11, 12
V_FLAG = 13
V_Z = 14
V_S = (16, 32, 48)
V_X = 64
V_Y = 136
V_ACC = 176
V_T = 212
V_A = 228
V_A8 = 232
V_E = 236
V_WR = 238
V_XE = 247
V_ST = 248
L_P = 0
L_A = 10240
L_ST = 11264
L_MX = 19456
L_Q = 20480
L_MC = L_ST
L_W = 29696
L_D = L_W + 73728
L_XS = L_D + 36864
L_LIST = L_MX
LDS = L_XS + 20480
V_GU = 248
SRD_G, SRD_U, SRD_D = 12, 68, 28

LO_BITS = f32bits(2.0 ** -80)
HI_BITS = f32bits(2.0 ** 100)

SRD_WS, SRD_X, SRD_OUT, SRD_WR = 16, 20, 24, 28


def qk1(t, rnd, sbuf):
    s = V_S[sbuf]
    return f"v_mfma_f32_32x32x16_bf16 {vr(s,16)}, {ar(A_K1+4*t,4)}, {ar(A_Q1[rnd&1],4)}, 0"


def qk2(t, rnd, sbuf):
    s = V_S[sbuf]
    return f"v_mfma_f32_32x32x8_bf16 {vr(s,16)}, {ar(A_K2+(t&~1),2)}, {ar(A_Q2[rnd&1]+2*(t&1),2)}, {vr(s,16)}"


def pv(t, rnd, sbuf, h):
    s = V_S[sbuf] + 8 * h
    return f"v_smfmac_f32_32x32x32_bf16 {ar(A_O[rnd&1],16)}, {ar(A_V+8*t+4*h,4)}, {vr(s,8)}, v{V_IPV}"


def wo_reg(ks, j):
    if ks < 8:
        return vr(V_X + 8 * j, 8), (lambda hf: vr(V_X + 8 * j + 4 * hf, 4))
    if j < 5:
        return vr(V_Y + 8 * j, 8), (lambda hf: vr(V_Y + 8 * j + 4 * hf, 4))
    b = A_V + 8 * (j - 5)
    return ar(b, 8), (lambda hf: ar(b + 4 * hf, 4))


def kv_ops(e, tok):
    ops = []

    def grp(g):
        b = 52 + 4 * g
        return [f"s_add_u32 s47, s46, {g}", "s_and_b32 s47, s47, 3", "s_add_u32 s47, s47, s34",
                f"s_lshl_b32 s{b}, s47, 12", f"s_lshl_b32 s{b+1}, s47, 10", f"s_mul_i32 s{b+2}, s47, 5120",
                f"s_add_u32 s{b}, s{b}, {WS_K1}", f"s_add_u32 s{b+1}, s{b+1}, {WS_K2}", f"s_add_u32 s{b+2}, s{b+2}, {WS_V}",
                f"s_add_u32 s{b+3}, s{b+2}, 2560"]

    def k1(t):
        def f():
            tok[("k1", t)] = e.vm(f"buffer_load_dwordx4 {ar(A_K1+4*t,4)}, v{V_L16}, {sr(SRD_WS,4)}, s{52+4*(t//4)} offen offset:{1024*(t%4)}")
        return f

    def k2(g):
        def f():
            tok[("k2", g)] = e.vm(f"buffer_load_dwordx4 {ar(A_K2+4*g,4)}, v{V_L16}, {sr(SRD_WS,4)}, s{53+4*g} offen")
        return f

    def v(t, h):
        def f():
            fr = 2 * t + h
            tok[("v", t)] = e.vm(f"buffer_load_dwordx4 {ar(A_V+4*fr,4)}, v{V_Y}, {sr(SRD_WS,4)}, s{54+4*(t//4)+((fr%8)//4)} offen offset:{640*(fr%4)}")
        return f
    for t in range(16):
        if t % 4 == 0:
            ops.append(("k2", t // 4, k2(t // 4)))
        ops.append(("k1", t, k1(t)))
        if t >= 1:
            ops.append(("v", t - 1, v(t - 1, 0)))
            ops.append(("v", t - 1, v(t - 1, 1)))
    ops.append(("v", 15, v(15, 0)))
    ops.append(("v", 15, v(15, 1)))
    return ops, grp


def kv_addr(e):
    t = V_T
    e(f"v_and_b32 v{t+2}, 31, v{V_L}")
    e(f"v_lshrrev_b32 v{t+3}, 5, v{V_L}")
    e(f"v_cmp_gt_u32 s[44:45], 18, v{t+2}")
    e(f"v_and_b32 v{t+5}, 30, v{t+2}")
    e(f"v_cmp_eq_u32 s[48:49], 20, v{t+5}")
    e(f"v_mov_b32 v{t+5}, {OOB >> 4}")
    e(f"v_subrev_u32 v{t+4}, 2, v{t+2}")
    e(f"v_cndmask_b32 v{t+5}, v{t+5}, v{t+2}, s[44:45]")
    e(f"v_cndmask_b32 v{t+5}, v{t+5}, v{t+4}, s[48:49]")
    e(f"v_mul_u32_u24 v{t+4}, 320, v{t+3}")
    e(f"v_lshl_add_u32 v{V_Y}, v{t+5}, 4, v{t+4}")
    e("s_lshl_b32 s34, s32, 2")
    e("s_bfe_u32 s46, s2, 0x20003")


def load_q(e, rnd, dyn=None):
    b = rnd & 1
    o = 1152 * rnd
    ops = [
        lambda: e.ds(f"ds_read_b32 {ar(A_Q1[b])}, v{V_Q1O} offset:{o}"),
        lambda: e.ds(f"ds_read_b32 {ar(A_Q1[b]+1)}, v{V_Q1O} offset:{o+64}"),
        lambda: e.ds(f"ds_read_b32 {ar(A_Q1[b]+2)}, v{V_Q1B} offset:{o}"),
        lambda: e.ds(f"ds_read_b32 {ar(A_Q1[b]+3)}, v{V_Q1B} offset:{o+64}"),
        lambda: e.ds(f"ds_read_b32 {ar(A_Q2[b])}, v{V_Q2O} offset:{o}"),
        lambda: e.ds(f"ds_read_b32 {ar(A_Q2[b]+3)}, v{V_Q2O} offset:{o}"),
    ]
    return ops


def load_xw(e, tok):
    s = V_S[1]
    e.vm(f"buffer_load_dwordx4 {vr(s,4)}, v{V_XO}, {sr(SRD_X,4)}, 0 offen")
    e.vm(f"buffer_load_dwordx4 {vr(s+4,4)}, v{V_XO}, {sr(SRD_X,4)}, 0 offen offset:1152")
    e.vm(f"buffer_load_ushort v{s+8}, v{V_XE}, {sr(SRD_X,4)}, 0 offen")
    tok["x"] = e.vm(f"buffer_load_ushort v{s+9}, v{V_XE}, {sr(SRD_X,4)}, 0 offen offset:1152")


def init_acc_ops():
    s = V_S[1]
    ops = []
    for j in range(8):
        for tk in range(2):
            src = s + 4 * tk + j // 2
            d = V_ACC + 4 * j + tk
            if j % 2 == 0:
                ops.append(f"v_lshlrev_b32 v{d}, 16, v{src}")
            else:
                ops.append(f"v_and_b32 v{d}, s43, v{src}")
    ops.append(f"v_lshlrev_b32 v{V_ACC+32}, 16, v{s+8}")
    ops.append(f"v_lshlrev_b32 v{V_ACC+33}, 16, v{s+9}")
    return ops


def zero_acc(e):
    e("s_mov_b32 s43, 0xffff0000")
    for j in range(9):
        e(f"v_mov_b32 v{V_ACC+4*j+2}, 0")
        e(f"v_mov_b32 v{V_ACC+4*j+3}, 0")


def write_partials(e, ob):
    o = A_O[ob]
    return [
        lambda: e.ds(f"ds_write_b128 v{V_PW}, {ar(o,4)}"),
        lambda: e.ds(f"ds_write_b128 v{V_PW}, {ar(o+4,4)} offset:1024"),
        lambda: e.ds(f"ds_write_b64 v{V_PW2}, {ar(o+8,2)}"),
    ]


def reduce_full(e, ecur):
    b = V_S[0]
    t = V_T
    tk = []
    tk.append(e.ds(f"ds_read2st64_b64 {vr(t+8,4)}, v{V_PR2} offset0:4 offset1:9"))
    tk.append(e.ds(f"ds_read2st64_b64 {vr(t+12,4)}, v{V_PR2} offset0:14 offset1:19"))
    for w in range(4):
        for pl in range(2):
            tk.append(e.ds(f"ds_read_b128 {vr(b+8*w+4*pl,4)}, v{V_L16} offset:{L_P + 2560*w + 1024*pl}"))
    e.wait(ds=tk[1])
    e(f"v_pk_add_f32 {vr(t+8,2)}, {vr(t+8,2)}, {vr(t+10,2)}")
    e(f"v_pk_add_f32 {vr(t+12,2)}, {vr(t+12,2)}, {vr(t+14,2)}")
    e(f"v_pk_add_f32 {vr(t+8,2)}, {vr(t+8,2)}, {vr(t+12,2)}")
    e(f"v_rcp_f32 v{t+10}, v{t+9}")
    e(f"v_subrev_u32 v{t+11}, {LO_BITS:#x}, v{t+9}")
    e(f"v_max_u32 v{V_FLAG}, v{V_FLAG}, v{t+11}")
    e(f"v_mul_f32 v{ecur}, v{t+8}, v{t+10}")
    e.wait(ds=tk[5])
    for i in range(4):
        e(f"v_pk_add_f32 {vr(b+2*i,2)}, {vr(b+2*i,2)}, {vr(b+8+2*i,2)}")
    e.wait(ds=tk[9])
    for i in range(4):
        e(f"v_pk_add_f32 {vr(b+16+2*i,2)}, {vr(b+16+2*i,2)}, {vr(b+24+2*i,2)}")
    for i in range(4):
        e(f"v_pk_add_f32 {vr(b+2*i,2)}, {vr(b+2*i,2)}, {vr(b+16+2*i,2)}")
    for i in range(4):
        e(f"v_pk_mul_f32 {vr(b+2*i,2)}, {vr(b+2*i,2)}, {vr(t+10,2)} op_sel_hi:[1,0]")
    for i in range(4):
        e(f"v_cvt_pk_bf16_f32 v{V_A+i}, v{b+2*i}, v{b+2*i+1}")


def smf16(j, areg, breg):
    return f"v_smfmac_f32_16x16x64_bf16 {vr(V_ACC+4*j,4)}, {vr(areg,4)}, {breg}, v{V_IWO}"


def wo_load(e, tok, ks, j, hf, so=39):
    _, part = wo_reg(ks, j)
    tok[("wo", ks, j)] = e.vm(f"buffer_load_dwordx4 {part(hf)}, v{V_WOO}, {sr(SRD_WS,4)}, s{so} offen offset:{2048*(j%2)+1024*hf}")


def wo_base(e, ks, j, so=39):
    e(f"s_mov_b32 s{so}, {ks*73728 + (j//2)*4096}")


ST = dict(loop=1, fin=2, ln2=3, pub=4, poll0=5, polled=6, gath=7, rows=8, ffn=9, end=10)
NPRE = 9


def prologue(e, tok):
    e("s_cmp_ge_u32 s2, 256")
    e("s_cbranch_scc1 L_k2_end")
    e.stamp(0)
    e("s_load_dwordx2 s[10:11], s[0:1], 96")
    e("s_load_dwordx2 s[4:5], s[0:1], 0")
    e("s_load_dwordx2 s[6:7], s[0:1], 48")
    e("s_load_dwordx2 s[8:9], s[0:1], 80")
    e("s_load_dwordx2 s[12:13], s[0:1], 56")
    e("s_load_dwordx2 s[68:69], s[0:1], 64")
    e("s_load_dwordx2 s[72:73], s[0:1], 72")
    code_prefetch(e, "L_k2_end", V_T, V_T + 15, "k2")
    t = V_T
    e(f"v_lshrrev_b32 v1, 6, v0")
    e(f"v_and_b32 v{V_L}, 63, v0")
    e(f"v_readfirstlane_b32 s32, v1")
    e(f"v_lshlrev_b32 v{V_L16}, 4, v{V_L}")
    kv_addr(e)
    ops, grp = kv_ops(e, tok)
    tok["kvops"] = ops
    for g in range(4):
        for x in grp(g):
            e(x)
    e("s_mul_i32 s33, s2, 9216")
    e("s_lshl_b32 s35, s32, 10")
    e("s_add_u32 s36, s33, s35")
    if WS_Q:
        e(f"s_add_u32 s36, s36, {WS_Q}")
    e(f"s_add_u32 s37, s36, 4096")
    e(f"s_add_u32 s38, s33, {WS_Q + 8192}")
    e(f"v_lshrrev_b32 v{t}, 4, v{V_L}")
    e(f"v_mul_u32_u24 v{t}, 2304, v{t}")
    e(f"v_add_u32 v{t}, s33, v{t}")
    e(f"v_and_b32 v{t+1}, 15, v{V_L}")
    e("s_lshl_b32 s39, s32, 8")
    e(f"v_lshl_add_u32 v{t+6}, v{t+1}, 4, s39")
    e("s_lshl_b32 s39, s32, 5")
    e("s_add_u32 s39, s39, 1024")
    e(f"v_lshl_add_u32 v{t+7}, v{t+1}, 1, s39")
    e(f"v_add_u32 v{V_XO}, v{t}, v{t+6}")
    e(f"v_add_u32 v{V_XE}, v{t}, v{t+7}")
    e(f"s_add_u32 m0, s35, {L_Q}")
    e("s_waitcnt lgkmcnt(0)")
    e.srd(SRD_WS, 10, WS_BYTES)
    e.vm(f"buffer_load_dwordx4 v{V_L16}, {sr(SRD_WS,4)}, s36 offen lds")
    e(f"s_add_u32 m0, s35, {L_Q + 4096}")
    ops[0][2]()
    e.vm(f"buffer_load_dwordx4 v{V_L16}, {sr(SRD_WS,4)}, s37 offen lds")
    e(f"s_mov_b32 m0, {L_Q + 8192}")
    ops[1][2]()
    tok["qdma"] = e.vm(f"buffer_load_dwordx4 v{V_L16}, {sr(SRD_WS,4)}, s38 offen lds")
    e.srd(SRD_X, 4, X_BYTES)
    e.srd(SRD_WR, 6, 1152)
    load_xw(e, tok)
    s = V_S[2]
    e.vm(f"buffer_load_dwordx4 {vr(s,4)}, v{t+6}, {sr(SRD_WR,4)}, 0 offen")
    tok["wr"] = e.vm(f"buffer_load_ushort v{s+4}, v{t+7}, {sr(SRD_WR,4)}, 0 offen")
    for k in range(2, NPRE):
        ops[k][2]()
    e.srd(SRD_OUT, 8, X_BYTES)
    e("s_cmp_lt_u32 s2, 144")
    e(f"s_cselect_b32 s{SRD_G+2}, {WF_BYTES}, 0")
    e(f"s_cselect_b32 s{SRD_U+2}, {WF_BYTES+1024}, 0")
    e(f"s_mov_b32 s{SRD_D+2}, s{SRD_G+2}")
    e(f"s_mov_b32 s{SRD_G+3}, 0x20000")
    e(f"s_mov_b32 s{SRD_U+3}, 0x20000")
    e(f"s_mov_b32 s{SRD_D}, s72")
    e(f"s_mov_b32 s{SRD_D+1}, s73")
    e(f"s_sub_u32 s{SRD_U}, s{SRD_U}, 1024")
    e(f"s_subb_u32 s{SRD_U+1}, s{SRD_U+1}, 0")
    e("s_and_b32 s3, s2, 7")
    e("s_mul_i32 s3, s3, 18")
    e("s_lshr_b32 s47, s2, 3")
    e("s_add_u32 s3, s3, s47")
    e("s_min_u32 s3, s3, 143")
    e(f"s_mul_i32 s48, s32, {16*9216}")
    e("s_lshl_b32 s47, s3, 6")
    e("s_add_u32 s48, s48, s47")
    e("s_mul_i32 s49, s3, 36864")
    e("s_mul_i32 s51, s32, 9216")
    e("s_add_u32 s49, s49, s51")
    e(f"s_add_u32 s51, s51, {L_D}")
    e("s_lshl_b32 s50, s32, 11")
    e(f"s_add_u32 s50, s50, {L_W}")
    e(f"v_lshrrev_b32 v{t}, 2, v{V_L}")
    e(f"v_and_b32 v{t+1}, 3, v{V_L}")
    e(f"v_bfe_u32 v{t+2}, v{V_L}, 5, 1")
    e(f"v_lshlrev_b32 v{t+2}, 1, v{t+2}")
    e(f"v_xor_b32 v{t+1}, v{t+1}, v{t+2}")
    e(f"v_mul_u32_u24 v{t}, 9216, v{t}")
    e(f"v_lshl_add_u32 v{V_GU}, v{t+1}, 4, v{t}")
    e(f"s_add_u32 s36, s36, {WS_HN - WS_Q}")
    e(f"s_add_u32 s37, s37, {WS_HN - WS_Q}")
    e(f"s_add_u32 s38, s38, {WS_HN - WS_Q}")
    e("s_lshl_b32 s44, s2, 2")
    e("s_add_u32 s44, s44, s32")
    e("s_lshl_b32 s44, s44, 10")
    e(f"s_add_u32 s44, s44, {WS_PART}")
    e("s_lshl_b32 s45, s32, 8")
    e("s_add_u32 s45, s45, s2")
    e("s_add_u32 s45, s45, 768")
    e(f"s_cmp_lt_u32 s45, {72*19}")
    e(f"s_cselect_b32 s47, 0, {OOB}")
    e(f"v_add_u32 v{V_GU+1}, s47, v{V_L16}")
    e("s_lshl_b32 s45, s45, 10")
    e(f"s_add_u32 s45, s45, {WS_PART}")
    e("s_cmp_eq_u32 s32, 0")
    e("s_cselect_b32 s38, s38, s45")
    e(f"v_and_b32 v{t}, 7, v{V_L}")
    e(f"v_mul_u32_u24 v{t}, 1152, v{t}")
    e(f"v_mov_b32 v{t+1}, {MCONST:#x}")
    e.ds(f"ds_write_b32 v{t}, v{t+1} offset:{L_MC}")
    e(f"v_bfe_u32 v{t}, v{V_L}, 2, 2")
    e(f"v_and_b32 v{t+1}, 1, v{V_L}")
    e(f"v_lshl_add_u32 v{t}, v{t}, 1, v{t+1}")
    e(f"v_lshlrev_b32 v{t}, 3, v{t}")
    e(f"v_add_u32 v{t}, {L_Q}, v{t}")
    e(f"v_bfe_u32 v{t+1}, v{V_L}, 4, 1")
    e(f"v_bfe_u32 v{t+2}, v{V_L}, 1, 1")
    e(f"v_lshl_add_u32 v{t+1}, v{t+1}, 1, v{t+2}")
    e(f"v_mul_u32_u24 v{t+1}, 9, v{t+1}")
    e(f"v_lshrrev_b32 v{t+3}, 5, v{V_L}")
    e(f"v_cmp_eq_u32 vcc, 0, v{t+3}")
    e(f"v_lshl_add_u32 v{t+3}, v{t+3}, 2, v{t+1}")
    for (dst, add, src) in ((V_Q1O, 0, t + 3), (V_Q1B, 1, t + 3), (V_Q2O, 8, t + 1)):
        e(f"v_add_u32 v{t+4}, {add}, v{src}")
        e(f"v_lshrrev_b32 v{t+5}, 1, v{t+4}")
        e(f"v_and_b32 v{t+4}, 1, v{t+4}")
        e(f"v_lshl_add_u32 v{t+4}, v{t+4}, 2, v{t}")
        e(f"v_lshl_add_u32 v{dst}, v{t+5}, 6, v{t+4}")
    e(f"v_mov_b32 v{t+4}, {L_MC}")
    e(f"v_cndmask_b32 v{V_Q2O}, v{t+4}, v{V_Q2O}, vcc")
    e(f"v_mul_u32_u24 v{V_IWO}, 0xaaaa, v{t+2}")
    e(f"v_add_u32 v{V_IWO}, 0x4444, v{V_IWO}")
    e(f"v_mov_b32 v{V_IPV}, 0xdddd")
    e(f"v_mov_b32 v{V_FLAG}, 0")
    e(f"v_mov_b32 v{V_Z}, 0")
    e(f"v_mov_b32 v{V_Z+1}, 0")
    for b in range(2):
        e(f"v_accvgpr_write_b32 {ar(A_Q2[b]+1)}, 0")
        e(f"v_accvgpr_write_b32 {ar(A_Q2[b]+2)}, 0")
    e(f"v_mfma_f32_32x32x8_bf16 {ar(A_O[0],16)}, {vr(V_Z,2)}, {vr(V_Z,2)}, 0")
    e(f"v_mfma_f32_32x32x8_bf16 {ar(A_O[1],16)}, {vr(V_Z,2)}, {vr(V_Z,2)}, 0")
    e(f"s_mul_i32 s34, s32, 18432")
    e(f"s_add_u32 s34, s34, {WS_WO}")
    e(f"v_add_u32 v{V_WOO}, s34, v{V_L16}")
    e(f"s_mul_i32 s34, s32, 2560")
    e(f"v_add_u32 v{V_PW}, s34, v{V_L16}")
    e(f"v_lshlrev_b32 v{V_PR2}, 3, v{V_L}")
    e(f"s_add_u32 s34, s34, 2048")
    e(f"v_add_u32 v{V_PW2}, s34, v{V_PR2}")
    e("s_lshr_b32 s34, s32, 1")
    e("s_lshl_b32 s34, s34, 10")
    e("s_and_b32 s35, s32, 1")
    e("s_lshl_b32 s35, s35, 3")
    e("s_add_u32 s34, s34, s35")
    e(f"v_add_u32 v{V_PR1}, s34, v{V_L16}")
    e("s_lshl_b32 s34, s32, 2")
    e(f"s_add_u32 s34, s34, {L_A}")
    e(f"v_add_u32 v{V_AW}, s34, v{V_L16}")
    zero_acc(e)
    for i in range(4):
        e(f"v_mov_b32 v{V_A+i}, -1")
    e(f"s_mov_b32 s42, {LO_BITS:#x}")
    e.wait(vm=tok["qdma"], ds=e.ds_n)
    e("s_barrier")
    for op in load_q(e, 0):
        q0 = op()
    for op in load_q(e, 1):
        op()
    e.wait(vm=tok["x"])
    for op in init_acc_ops():
        e(op)
    e.wait(vm=tok["wr"], ds=q0)
    e(qk1(0, 0, 0))
    e(qk2(0, 0, 0))
    for j in range(8):
        if j % 2 == 0:
            e(f"v_lshlrev_b32 v{V_WR+j}, 16, v{s+j//2}")
        else:
            e(f"v_and_b32 v{V_WR+j}, s43, v{s+j//2}")
    e(f"v_lshlrev_b32 v{V_WR+8}, 16, v{s+4}")
    sw = V_ST + 6
    e(f"v_add_f32 v{sw}, v{V_WR}, v{V_WR+1}")
    for j in range(2, 9):
        e(f"v_add_f32 v{sw}, v{sw}, v{V_WR+j}")
    e.wait(ds=e.ds_n)


def step_order():
    o = []
    for t in range(12):
        o += [(0, t), (1, t)]
    o += [(0, t) for t in range(12, 16)] + [(1, t) for t in range(12, 16)]
    for r in range(2, 8):
        o += [(r, t) for t in range(16)]
    return o


def mainloop(e, tok):
    T = V_T
    order = step_order()
    ex = [dict(A=[], B=[], C=[], D=[], M=[], V={}) for _ in range(128)]

    def add(tau, pos, f):
        ex[tau][pos].append(f)

    def valu(tau, at, ops):
        ex[tau]["V"].setdefault(at, []).extend(ops)

    ops = tok["kvops"][NPRE:]
    for k, (_, _, f) in enumerate(ops):
        add(k // 2, "C" if k % 2 == 0 else "D", f)
    kv_last = (len(ops) - 1) // 2
    for tau in range(0, 29):
        def w(tau=tau):
            need = [tok[("k1", order[tau + 2][1])]]
            if tau >= 1:
                need.append(tok[("v", order[tau - 1][1])])
            e.wait(vm=max(need))
        add(tau, "A", w)
    for r in range(2, 8):
        t0 = 27 if r == 2 else 16 * r - 4
        q = load_q(e, r)
        for k in range(6):
            add(t0 + k // 3, "ACD"[k % 3] if r > 2 else "BCD"[k % 3], q[k])
        add(16 * r - 2, "D", lambda: e.wait(ds=e.ds_n))
    for j in range(9):
        tau = kv_last + 1 + j // 2
        if j % 2 == 0:
            add(tau, "A", lambda j=j: wo_base(e, 0, j))
        add(tau, "CD"[j % 2], lambda j=j: wo_load(e, tok, 0, j, 0))
        add(tau, "CD"[j % 2], lambda j=j: wo_load(e, tok, 0, j, 1))
    for j in range(5):
        tau = (64, 80, 96)[j // 2]
        if j % 2 == 0:
            add(tau, "A", lambda j=j: wo_base(e, 8, j))
        add(tau, "CD"[j % 2], lambda j=j: wo_load(e, tok, 8, j, 0))
        add(tau, "CD"[j % 2], lambda j=j: wo_load(e, tok, 8, j, 1))
    for j in range(5, 9):
        tau, pos = {5: (116, "C"), 6: (118, "C"), 7: (118, "D"), 8: (123, "C")}[j]
        if j != 7:
            add(tau, "A" if j != 8 else "B", lambda j=j: wo_base(e, 8, j, 40))
        add(tau, pos, lambda j=j: wo_load(e, tok, 8, j, 0, 40))
        add(tau, pos, lambda j=j: wo_load(e, tok, 8, j, 1, 40))
    for k, so in enumerate((36, 37, 44, 38)):
        add(27 + k, "B" if k >= 2 else "A", lambda so=so: e.vm(f"buffer_store_dwordx4 {vr(V_A,4)}, v{V_GU+1 if so == 38 else V_L16}, {sr(SRD_WS,4)}, s{so} offen sc1"))
    def gu(i, tau):
        add(tau, "A", lambda: e(f"s_add_u32 m0, s50, {8192*i}"))
        add(tau, "C", lambda: e.vm(f"buffer_load_dwordx4 v{V_GU}, {sr(SRD_G,4)}, s48 offen lds"))
        add(tau, "D", lambda: tok.__setitem__("ffn", e.vm(f"buffer_load_dwordx4 v{V_GU}, {sr(SRD_U,4)}, s48 offen offset:1024 lds")))
        add(tau, "D", lambda: e(f"s_add_u32 s48, s48, {64*9216}"))

    def dn(i0, n, tau):
        add(tau, "A", lambda: e(f"s_add_u32 m0, s51, {1024*i0}"))
        for k in range(n):
            add(tau, "CD"[k % 2], lambda k=k: tok.__setitem__("ffn", e.vm(f"buffer_load_dwordx4 v{V_L16}, {sr(SRD_D,4)}, s49 offen offset:{1024*k} lds")))
        add(tau, "D", lambda: e(f"s_add_u32 s49, s49, {1024*n}"))
    for i, tau in enumerate((34, 62, 63, 78, 79, 94, 95, 110, 111)):
        gu(i, tau)
    for i, tau in enumerate((70, 86, 102)):
        dn(2 * i, 2, tau)
    dn(6, 2, 124)
    dn(8, 1, 125)
    for p in range(7):
        b = {0: 28, 1: 37}.get(p, 16 * (p + 1))
        wr = write_partials(e, p & 1)
        add(b + 1, "C", wr[0]); add(b + 1, "D", wr[1]); add(b + 2, "A", wr[2])
        add(b + 2, "D", lambda: e.wait(ds=e.ds_n)); add(b + 2, "D", lambda: e("s_barrier"))
        add(b + 3, "A", lambda: e.ds(f"ds_read2st64_b64 {vr(T+8,4)}, v{V_PR2} offset0:4 offset1:9"))
        add(b + 3, "C", lambda: e.ds(f"ds_read2st64_b64 {vr(T+12,4)}, v{V_PR2} offset0:14 offset1:19"))
        add(b + 3, "D", lambda: e.ds(f"ds_read2st64_b64 {vr(T,4)}, v{V_PR1} offset0:0 offset1:5"))
        add(b + 4, "A", lambda: e.ds(f"ds_read2st64_b64 {vr(T+4,4)}, v{V_PR1} offset0:10 offset1:15"))
        if p < 6:
            ex[b + 3]["M"].append((f"v_mfma_f32_32x32x8_bf16 {ar(A_O[p&1],16)}, {vr(V_Z,2)}, {vr(V_Z,2)}, 0", [], 3))
        add(b + 4, "C", lambda: e.wait(ds=e.ds_n - 1))
        valu(b + 4, 11, [f"v_pk_add_f32 {vr(T+8,2)}, {vr(T+8,2)}, {vr(T+10,2)}",
                         f"v_pk_add_f32 {vr(T+12,2)}, {vr(T+12,2)}, {vr(T+14,2)}",
                         f"v_pk_add_f32 {vr(T,2)}, {vr(T,2)}, {vr(T+2,2)}",
                         f"v_pk_add_f32 {vr(T+8,2)}, {vr(T+8,2)}, {vr(T+12,2)}"])
        add(b + 4, "D", lambda: e.wait(ds=e.ds_n))
        valu(b + 4, 13, [f"v_rcp_f32 v{T+10}, v{T+9}", f"v_subrev_u32 v{T+11}, s42, v{T+9}"])
        valu(b + 4, 15, [f"v_pk_add_f32 {vr(T+4,2)}, {vr(T+4,2)}, {vr(T+6,2)}",
                         f"v_mul_f32 v{V_E+(p&1)}, v{T+8}, v{T+10}",
                         f"v_max_u32 v{V_FLAG}, v{V_FLAG}, v{T+11}",
                         f"v_pk_add_f32 {vr(T,2)}, {vr(T,2)}, {vr(T+4,2)}"])
        valu(b + 5, 1, [f"v_mul_f32 v{T}, v{T}, v{T+10}", f"v_mul_f32 v{T+1}, v{T+1}, v{T+10}"])
        valu(b + 5, 3, [f"v_cvt_pk_bf16_f32 v{T}, v{T}, v{T+1}"])
        if p & 1:
            valu(b + 5, 5, [f"v_cvt_pk_bf16_f32 v{V_A8+p//2}, v{V_E}, v{V_E+1}"])
        add(b + 5, "C", lambda: e.ds(f"ds_write_b32 v{V_AW}, v{T}"))
        add(b + 5, "D", lambda: e.wait(ds=e.ds_n)); add(b + 5, "D", lambda: e("s_barrier"))
        add(b + 6, "A", lambda: tok.__setitem__("afrag", e.ds(f"ds_read_b128 {vr(V_A,4)}, v{V_L16} offset:{L_A}")))
        add(b + 7, "C", lambda p=p: e.wait(vm=tok[("wo", p, 1)], ds=tok["afrag"]))
        for j in range(9):
            tau = b + 7 + j // 2
            if j % 2 == 0:
                add(tau, "A", lambda j=j, p=p: wo_base(e, p + 1, j))
                if j:
                    add(tau, "C", lambda j=j, p=p: e.wait(vm=tok[("wo", p, min(j + 1, 8))]))
            sh = [lambda j=j, p=p: wo_load(e, tok, p + 1, j, 0), lambda j=j, p=p: wo_load(e, tok, p + 1, j, 1)]
            ex[tau]["M"].append((smf16(j, V_A, wo_reg(p, j)[0]), sh, 1))

    e(".p2align 3")
    for tau in range(128):
        x = ex[tau]
        segs = []
        if tau < 127:
            rn, tn = order[tau + 1]
            segs.append([qk1(tn, rn, (tau + 1) % 3), x["A"], 4])
            segs.append([qk2(tn, rn, (tau + 1) % 3), x["B"], 4])
        else:
            segs.append([None, x["A"], 4]); segs.append([None, x["B"], 4])
        if tau > 0:
            rp, tp = order[tau - 1]
            segC = [pv(tp, rp, (tau - 1) % 3, 0), x["C"], 4]
            segD = [pv(tp, rp, (tau - 1) % 3, 1), x["D"], 4]
        else:
            segC = [None, x["C"], 4]; segD = [None, x["D"], 4]
        M = x["M"]
        if len(M) == 0:
            segs += [segC, segD]
        elif len(M) == 1 and M[0][2] == 1:
            segD[2] = 3
            segs += [segC, segD, [M[0][0], M[0][1], 1]]
        elif len(M) == 1:
            segs[0][2] = 3; segC[2] = 3; segD[2] = 3
            segs += [segC, [M[0][0], M[0][1], 3], segD]
        else:
            assert len(M) == 2 and M[0][2] == 1 and M[1][2] == 1, tau
            segC[2] = 3; segD[2] = 3
            segs += [segC, [M[0][0], M[0][1], 1], segD, [M[1][0], M[1][1], 1]]
        assert sum(s[2] for s in segs) == 16
        assert not (M and x["V"]), tau
        if tau == 0:
            e.stamp(ST["loop"])
        i = 0
        sb = V_S[tau % 3]
        for m, sh, n in segs:
            if m:
                e(m)
            for f in sh:
                f()
            for _ in range(n):
                e(f"v_exp_f32 v{sb+i}, v{sb+i}")
                for op in x["V"].get(i, []):
                    e(op)
                i += 1
    e(pv(15, 7, 127 % 3, 0))
    e.nop(1)
    e(pv(15, 7, 127 % 3, 1))


def final_proj(e, tok):
    e.stamp(ST["fin"])
    e.nop(12)
    for op in write_partials(e, 1):
        op()
    e.wait(ds=e.ds_n)
    e("s_barrier")
    reduce_full(e, V_E + 1)
    e(f"v_cvt_pk_bf16_f32 v{V_A8+3}, v{V_E}, v{V_E+1}")
    e(f"v_cmp_lt_u32 vcc, {HI_BITS-LO_BITS:#x}, v{V_FLAG}")
    e.wait(vm=max(tok[("wo", 7, 8)], tok[("wo", 8, 8)]))
    e("s_cbranch_vccnz L_k2_slow")
    for j in range(9):
        e(smf16(j, V_A, wo_reg(7, j)[0]))
    for j in range(9):
        e(smf16(j, V_A8, wo_reg(8, j)[0]))


def ln2_tail(e):
    st = V_ST
    T = V_T
    e.label("L_k2_ln2")
    e.stamp(ST["ln2"])
    e(f"s_lshl_b32 s34, s32, 11")
    e(f"s_add_u32 s34, s34, {L_ST}")
    e(f"v_add_u32 v{T+14}, s34, v{V_L16}")
    e(f"v_lshrrev_b32 v{T+12}, 3, v{V_L}")
    e(f"v_and_b32 v{T+12}, 6, v{T+12}")
    e(f"s_lshl_b32 s34, s2, 3")
    e(f"v_add_u32 v{T+12}, s34, v{T+12}")
    e(f"v_and_b32 v{T+13}, 7, v{V_L}")
    H = lambda j: vr(V_ACC + 4 * j, 2)
    N = lambda j: vr(V_ACC + 4 * j + 2, 2)
    for j in range(9):
        e(f"v_pk_add_f32 {H(j)}, {H(j)}, {N(j)}")
        if j == 1:
            e(f"v_pk_mul_f32 {vr(st+2,2)}, {H(0)}, {H(0)}")
            e(f"v_pk_mul_f32 {vr(st+4,2)}, {H(0)}, {vr(V_WR,2)} op_sel_hi:[1,0]")
            e(f"v_pk_add_f32 {vr(st,2)}, {H(0)}, {H(1)}")
        if j >= 1:
            if j >= 2:
                e(f"v_pk_add_f32 {vr(st,2)}, {vr(st,2)}, {H(j)}")
            e(f"v_pk_fma_f32 {vr(st+2,2)}, {H(j)}, {H(j)}, {vr(st+2,2)}")
            sel = f"op_sel:[0,{j&1},0] op_sel_hi:[1,{j&1},1]"
            e(f"v_pk_fma_f32 {vr(st+4,2)}, {H(j)}, {vr(V_WR+(j&~1),2)}, {vr(st+4,2)} {sel}")
    e(f"v_and_b32 v{T+11}, 8, v{V_L}")
    for sh in (8, 4, 2, 1):
        for i in range(7):
            e(f"v_add_f32_dpp v{st+i}, v{st+i}, v{st+i} row_ror:{sh} row_mask:0xf bank_mask:0xf")
    e.ds(f"ds_write_b128 v{T+14}, {vr(st,4)}")
    e.ds(f"ds_write_b128 v{T+14}, {vr(st+4,4)} offset:1024")
    e(f"v_cmp_ne_u32 vcc, 0, v{T+11}")
    e("s_lshl_b32 s34, s2, 4")
    e(f"s_add_u32 s34, s34, {WS_R}")
    e(f"v_lshl_add_u32 v{T+13}, v{T+13}, 13, s34")
    e(f"v_mov_b32 v{T+10}, 1")
    e("s_movk_i32 s41, 1152")
    e.wait(ds=e.ds_n)
    e("s_barrier")
    b = V_S[0]
    tk = []
    for w in range(4):
        for pl in range(2):
            tk.append(e.ds(f"ds_read_b128 {vr(b+8*w+4*pl,4)}, v{V_L16} offset:{L_ST + 2048*w + 1024*pl}"))
    e(f"s_mov_b32 s34, {f32bits(1.0/576):#x}")
    e(f"s_mov_b32 s35, s34")
    e.wait(ds=tk[3])
    for i in range(4):
        e(f"v_pk_add_f32 {vr(b+2*i,2)}, {vr(b+2*i,2)}, {vr(b+8+2*i,2)}")
    e.wait(ds=tk[7])
    for i in range(4):
        e(f"v_pk_add_f32 {vr(b+16+2*i,2)}, {vr(b+16+2*i,2)}, {vr(b+24+2*i,2)}")
    for i in range(4):
        e(f"v_pk_add_f32 {vr(b+2*i,2)}, {vr(b+2*i,2)}, {vr(b+16+2*i,2)}")
    e(f"v_pk_mul_f32 {vr(b,2)}, {vr(b,2)}, s[34:35]")
    e(f"v_pk_mul_f32 {vr(b+2,2)}, {vr(b+2,2)}, s[34:35]")
    e(f"v_pk_fma_f32 {vr(b+2,2)}, {vr(b,2)}, {vr(b,2)}, {vr(b+2,2)} neg_lo:[1,0,0] neg_hi:[1,0,0]")
    e(f"v_pk_fma_f32 {vr(b+4,2)}, {vr(b,2)}, {vr(b+6,2)}, {vr(b+4,2)} op_sel_hi:[1,0,1] neg_lo:[1,0,0] neg_hi:[1,0,0]")
    for i in range(2):
        e(f"v_max_f32 v{b+2+i}, 0, v{b+2+i}")
    for i in range(2):
        e(f"v_add_f32 v{b+2+i}, {f32bits(1e-5):#x}, v{b+2+i}")
    for i in range(2):
        e(f"v_rsq_f32 v{b+2+i}, v{b+2+i}")
    e(f"v_add_u32 v{T+11}, 1, v{T+12}")
    e(f"v_pk_mul_f32 {vr(b+4,2)}, {vr(b+4,2)}, {vr(b+2,2)}")
    e(f"v_pk_mul_f32 {vr(b,2)}, {vr(b,2)}, {vr(b+2,2)} neg_lo:[1,0] neg_hi:[1,0]")
    e("s_mov_b32 s34, 0x7ff")
    for i in range(2):
        e(f"v_ashrrev_i32 v{b+8+i}, 31, v{b+4+i}")
    for i in range(2):
        e(f"v_or_b32 v{b+8+i}, 0x80000000, v{b+8+i}")
    for i in range(2):
        e(f"v_xor_b32 v{b+4+i}, v{b+4+i}, v{b+8+i}")
    for i in range(2):
        e(f"v_lshrrev_b32 v{b+4+i}, 1, v{b+4+i}")
    for i in range(2):
        e(f"v_max_u32 v{b+4+i}, 0x800, v{b+4+i}")
    e(f"v_bfi_b32 v{b+4}, s34, v{T+12}, v{b+4}")
    e(f"v_bfi_b32 v{b+5}, s34, v{T+11}, v{b+5}")
    e("s_cmp_lg_u32 s32, 0")
    e("s_cbranch_scc1 L_k2_nopub")
    for q in range(8):
        e(f"v_readlane_b32 s{52+q}, v{b+4+q%2}, {16*(q//2)}")
    e(f"v_cndmask_b32 v{b+8}, v{b+4}, v{b+5}, vcc")
    e(f"v_mov_b32 v{b+9}, 0")
    pairs = (60, 62, 64, 66, 44, 46, 4, 6)
    for q in range(8):
        e(f"v_cmp_gt_u32 s[{pairs[q]}:{pairs[q]+1}], s{52+q}, v{b+8}")
    for q in range(8):
        e(f"v_addc_co_u32 v{b+9}, vcc, 0, v{b+9}, s[{pairs[q]}:{pairs[q]+1}]")
    e(f"v_lshrrev_b32 v{b+10}, 2, v{b+9}")
    e(f"v_and_b32 v{b+9}, 3, v{b+9}")
    e(f"v_lshl_add_u32 v{b+10}, v{b+10}, 12, v{T+13}")
    e(f"v_lshl_add_u32 v{b+10}, v{b+9}, 2, v{b+10}")
    e(f"buffer_store_dword v{b+8}, v{b+10}, {sr(SRD_WS,4)}, 0 offen sc1")
    e.label("L_k2_nopub")
    e.stamp(ST["pub"])
    for j in range(9):
        e(f"v_pk_fma_f32 {N(j)}, {H(j)}, {vr(b+2,2)}, {vr(b,2)}")
    e(f"s_mov_b32 s34, {WS_HN}")
    e(f"v_and_b32 v{T}, 1, v{V_L}")
    e(f"v_mul_u32_u24 v{T+1}, 1150, v{T}")
    e(f"v_add_u32 v{V_XE}, v{V_XE}, v{T+1}")
    e(f"v_mul_u32_u24 v{T+1}, 0xfe0606, v{T}")
    e(f"v_lshlrev_b32 v{T+2}, 25, v{T}")
    e(f"v_sub_u32 v{T+1}, v{T+1}, v{T+2}")
    e(f"v_lshlrev_b32 v{T+2}, 24, v{T}")
    e(f"v_sub_u32 v{T+1}, v{T+1}, v{T+2}")
    e(f"v_add_u32 v{T+1}, 0x05040100, v{T+1}")

    def pack(d, src):
        for tk in range(2):
            for i in range(4):
                e(f"v_cvt_pk_bf16_f32 v{d+4*tk+i}, v{src(2*i,tk)}, v{src(2*i+1,tk)}")
        e(f"v_cvt_pk_bf16_f32 v{d+8}, v{src(8,0)}, v{src(8,1)}")
        e(f"v_min_u32 v{d}, -2, v{d}")
        e(f"v_min_u32 v{d+4}, -2, v{d+4}")
        e(f"v_mov_b32_dpp v{d+9}, v{d+8} quad_perm:[1,0,3,2] row_mask:0xf bank_mask:0xf")
        e(f"v_perm_b32 v{d+8}, v{d+9}, v{d+8}, v{T+1}")
        e(f"v_min_u32 v{d+8}, -2, v{d+8}")
    d = V_S[1]
    pack(d, lambda j, tk: V_ACC + 4 * j + 2 + tk)
    for tk in range(2):
        e.vm(f"buffer_store_dwordx4 {vr(d+4*tk,4)}, v{V_XO}, {sr(SRD_WS,4)}, s34 offen offset:{1152*tk} sc1")
    e.vm(f"buffer_store_dword v{d+8}, v{V_XE}, {sr(SRD_WS,4)}, s34 offen sc1")
    for j in range(9):
        e(f"v_pk_add_f32 {H(j)}, {H(j)}, {N(j)}")
    pack(V_OUT, lambda j, tk: V_ACC + 4 * j + tk)


V_OUT = 52
V_K = 64
V_D = 96
V_XF = 128
A_WF, A_DF = 0, 72


def rank16(e, cnt, x, tmp):
    e(f"v_mov_b32 v{cnt}, 0")
    for k in range(1, 16):
        t = tmp + (k & 1)
        e(f"v_sub_u32_dpp v{t}, v{x}, v{x} row_ror:{k} row_mask:0xf bank_mask:0xf")
        if k > 1:
            e(f"v_alignbit_b32 v{cnt}, v{cnt}, v{tmp + ((k-1) & 1)}, 31")
    e(f"v_alignbit_b32 v{cnt}, v{cnt}, v{tmp+1}, 31")
    e(f"v_bcnt_u32_b32 v{cnt}, v{cnt}, 0")


def spin_guard(e, label):
    e("s_add_u32 s47, s47, 1")
    e(f"s_cmp_lt_u32 s47, {SPIN}")
    e(f"s_cbranch_scc1 {label}")


def moe_tail(e, tok):
    T = V_T
    D = V_D
    K = V_K
    TOKA = T + 12
    V_C, V_G, V_LW = T + 2, T + 3, T + 4
    V_LC, V_LG = T + 5, T + 6
    e(f"v_and_b32 v{V_C}, 15, v{V_L}")
    e(f"v_lshrrev_b32 v{V_G}, 4, v{V_L}")
    e("s_lshl_b32 s35, s32, 8")
    e(f"s_add_u32 s35, s35, {L_LIST}")
    e(f"v_lshl_add_u32 v{V_LW}, v{V_C}, 2, s35")
    e.ds(f"ds_write_b32 v{V_LW}, v{V_Z}")
    e(f"v_lshrrev_b32 v{D}, 3, v{V_L}")
    e("s_and_b32 s36, s32, 1")
    e("s_lshl_b32 s37, s36, 5")
    e("s_add_u32 s37, s37, s35")
    e(f"v_lshl_add_u32 v{T+7}, v{D}, 2, s37")
    e(f"v_and_b32 v{D}, 7, v{V_L}")
    e("s_lshl_b32 s37, s36, 2")
    e(f"v_add_u32 v{D+1}, s37, v{V_G}")
    e(f"v_xor_b32 v{D}, v{D}, v{D+1}")
    e(f"v_lshlrev_b32 v{T+8}, 4, v{D}")
    e("s_and_b32 s38, s2, 7")
    e("s_lshl_b32 s38, s38, 13")
    e(f"s_add_u32 s38, s38, {WS_R}")
    e(f"s_waitcnt vmcnt({e.vm_n - tok['ffn']})")
    e("s_barrier")
    e("s_cmp_ge_u32 s2, 144")
    e("s_cbranch_scc1 L_k2_nofrag")
    e(f"v_lshrrev_b32 v{D}, 2, v{V_C}")
    e(f"v_and_b32 v{D+1}, 1, v{V_G}")
    e(f"v_lshrrev_b32 v{D+2}, 1, v{V_G}")
    e(f"v_lshl_add_u32 v{D+3}, v{D+1}, 3, v{D}")
    e(f"v_lshlrev_b32 v{D+3}, 6, v{D+3}")
    e(f"v_lshl_add_u32 v{D+3}, v{D+2}, 11, v{D+3}")
    e(f"v_bfe_u32 v{D+4}, v{V_C}, 1, 1")
    e(f"v_lshl_add_u32 v{D+3}, v{D+4}, 10, v{D+3}")
    e(f"v_and_b32 v{D+4}, 1, v{V_C}")
    e(f"v_lshl_add_u32 v{D+3}, v{D+4}, 3, v{D+3}")
    e(f"v_lshlrev_b32 v{D+4}, 1, v{D+1}")
    e(f"v_xor_b32 v{D+4}, s32, v{D+4}")
    e(f"v_lshl_add_u32 v{D+3}, v{D+4}, 4, v{D+3}")
    e(f"v_add_u32 v{D+3}, {L_W}, v{D+3}")
    e(f"v_add_u32 v{D+4}, {9*4096}, v{D+3}")
    e(f"v_lshrrev_b32 v{D+5}, 1, v{D}")
    e(f"v_lshlrev_b32 v{D+5}, 3, v{D+5}")
    e(f"v_lshl_add_u32 v{D+5}, v{D+1}, 2, v{D+5}")
    e(f"v_lshl_add_u32 v{D+5}, v{D+2}, 1, v{D+5}")
    e(f"v_and_b32 v{D+6}, 1, v{D}")
    e(f"v_add_u32 v{D+5}, v{D+5}, v{D+6}")
    e(f"v_mul_u32_u24 v{D+5}, 1152, v{D+5}")
    e(f"v_and_b32 v{D+6}, 3, v{V_C}")
    e(f"v_lshl_add_u32 v{D+5}, v{D+6}, 3, v{D+5}")
    e("s_mul_i32 s37, s32, 288")
    e(f"s_add_u32 s37, s37, {L_D}")
    e(f"v_add_u32 v{D+5}, s37, v{D+5}")
    n = 0
    for s in range(18):
        for hh in range(2):
            e(f"ds_read_b64_tr_b16 {ar(A_WF+4*s+2*hh,2)}, v{D+3+s//9} offset:{4096*(s%9)+256*hh}")
            n += 1
            if n % 8 == 0:
                e("s_waitcnt lgkmcnt(6)")
    for j in range(9):
        for hh in range(2):
            e(f"ds_read_b64_tr_b16 {ar(A_DF+4*j+2*hh,2)}, v{D+5} offset:{18432*hh+32*j}")
            n += 1
            if n % 8 == 0:
                e("s_waitcnt lgkmcnt(6)")
    e.label("L_k2_nofrag")
    e.stamp(ST["poll0"])
    e("s_mov_b32 s47, 0")
    e.label("L_k2_poll")
    for i in range(4):
        e(f"buffer_load_dwordx4 {vr(K+4*i,4)}, v{V_L16}, {sr(SRD_WS,4)}, s38 offen offset:{1024*i} sc1")
    e.wait_all()
    for pl in range(3):
        e(f"v_max3_u32 v{D+pl}, v{K+pl}, v{K+4+pl}, v{K+8+pl}")
    for pl in range(3):
        e(f"v_max_u32 v{D+pl}, v{D+pl}, v{K+12+pl}")
    e(f"v_mov_b32 v{D+4}, v{D}")
    e(f"v_max3_u32 v{D+3}, v{D}, v{D+1}, v{D+2}")
    e(f"v_cmp_gt_i32 vcc, 0, v{D+3}")
    e(f"v_permlane16_swap_b32 v{D+4}, v{D}")
    e("s_cbranch_vccz L_k2_polled")
    spin_guard(e, "L_k2_poll")
    e.label("L_k2_polled")
    e.stamp(ST["polled"])
    e(f"v_max_u32 v{D}, v{D}, v{D+4}")
    e(f"v_mov_b32 v{D+4}, v{D}")
    e.nop(2)
    e(f"v_permlane32_swap_b32 v{D+4}, v{D}")
    e.nop(1)
    e(f"v_max_u32 v{D}, v{D}, v{D+4}")
    e.nop(1)
    rank16(e, D + 5, D, D + 6)
    e(f"v_cmp_eq_u32 vcc, 8, v{D+5}")
    e("s_ff1_i32_b64 s52, vcc")
    e("s_and_b32 s52, s52, 63")
    e(f"v_readlane_b32 s52, v{D}, s52")
    e.nop(2)
    for i in range(4):
        e(f"v_cmp_le_u32 s[{60+2*i}:{61+2*i}], s52, v{K+4*i}")
    e(f"v_cmp_le_u32 s[44:45], s52, v{D+2}")
    e(f"v_cmp_le_u32 vcc, s52, v{D+1}")

    def counts(first):
        for i in range(4):
            e(f"s_bcnt1_i32_b64 s{54+i}, s[{60+2*i}:{61+2*i}]")
        if first:
            e("s_mov_b32 s53, 0")
        else:
            e("s_mov_b32 s53, s57_old".replace("s57_old", "s58"))
            e("s_add_u32 s54, s54, s53")
        e("s_add_u32 s55, s55, s54")
        e("s_add_u32 s56, s56, s55")
        e("s_add_u32 s58, s57, s56")
        e("s_cmp_gt_u32 s58, 16")
        e("s_cbranch_scc1 L_k2_selslow")

    def compact(pl):
        for i in range(4):
            e(f"v_mbcnt_lo_u32_b32 v{D+8+i}, s{60+2*i}, 0")
        for i in range(4):
            e(f"v_mbcnt_hi_u32_b32 v{D+8+i}, s{61+2*i}, v{D+8+i}")
        for i in range(4):
            e(f"s_lshl_b32 s{53+i}, s{53+i}, 2")
            e(f"s_add_u32 s{53+i}, s{53+i}, s35")
        for i in range(4):
            e(f"v_lshl_add_u32 v{D+8+i}, v{D+8+i}, 2, s{53+i}")
        for i in range(4):
            e(f"s_mov_b64 exec, s[{60+2*i}:{61+2*i}]")
            e(f"ds_write_b32 v{D+8+i}, v{K+4*i+pl}")
        e("s_mov_b64 exec, -1")
    e("s_cmp_lg_u64 s[44:45], 0")
    e("s_cbranch_scc1 L_k2_selslow")
    counts(True)
    compact(0)
    e("s_cbranch_vccz L_k2_listed")
    for i in range(4):
        e(f"v_cmp_le_u32 s[{60+2*i}:{61+2*i}], s52, v{K+4*i+1}")
    counts(False)
    compact(1)
    e.label("L_k2_listed")
    e(f"ds_read_b32 v{V_LG}, v{T+7}")
    e(f"ds_read_b32 v{V_LC}, v{V_LW}")
    e("s_lshr_b32 s37, s32, 1")
    e("s_lshl_b32 s52, s37, 7")
    e(f"s_add_u32 s52, s52, {WS_HN}")
    e("s_lshl_b32 s53, s37, 11")
    e("s_lshl_b32 s54, s36, 10")
    e("s_add_u32 s53, s53, s54")
    e(f"s_add_u32 s53, s53, {L_XS}")
    e("s_cmp_ge_u32 s2, 144")
    e("s_waitcnt lgkmcnt(1)")
    e("s_cbranch_scc1 L_k2_nogather")
    e(f"v_and_b32 v{D}, 0x7ff, v{V_LG}")
    e(f"v_cmp_eq_u32 vcc, 0, v{V_LG}")
    e(f"v_mad_u32_u24 v{T+9}, v{D}, s43, v{T+8}".replace("s43", "s41"))
    e(f"v_mov_b32 v{D+1}, {OOB}")
    e(f"v_cndmask_b32 v{T+9}, v{T+9}, v{D+1}, vcc")

    def gather():
        for i in range(5):
            e(f"s_add_u32 m0, s53, {4096*i}")
            if i < 4:
                e(f"s_add_u32 s54, s52, {256*i}")
            else:
                e(f"s_mov_b32 s54, {WS_HN + 1024}")
            e(f"buffer_load_dwordx4 v{T+9}, {sr(SRD_WS,4)}, s54 offen sc1 lds")
    gather()
    e.label("L_k2_nogather")
    e.stamp(ST["gath"])
    e("s_waitcnt lgkmcnt(0)")
    rank16(e, D + 5, V_LC, D + 6)
    e(f"v_cmp_le_u32 s[60:61], 8, v{D+5}")
    e(f"v_lshlrev_b32 v{D}, v{V_C}, 1".replace(f"v{V_C}, 1", f"v{V_C}, v{T+10}"))
    e(f"v_subrev_u32 v{D}, 1, v{D}")
    e(f"v_and_b32 v{D}, s60, v{D}")
    e(f"v_bcnt_u32_b32 v{D+8}, v{D}, 0")
    e(f"v_and_b32 v{D+1}, 0x7ff, v{V_LC}")
    e(f"v_add_u32 v{D+2}, 1, v{D+8}")
    e(f"v_cndmask_b32 v{D+2}, 0, v{D+2}, s[60:61]")
    e(f"v_sub_u32 v{D+1}, v{D+1}, v{TOKA}")
    e(f"v_cmp_eq_u32 s[62:63], 0, v{D+1}")
    e(f"v_cmp_eq_u32 s[64:65], 1, v{D+1}")
    e(f"v_mov_b32 v{D+9}, {OOB}")
    e(f"v_cndmask_b32 v{D+3}, 0, v{D+2}, s[62:63]")
    e(f"v_cndmask_b32 v{D+4}, 0, v{D+2}, s[64:65]")
    e(f"v_lshl_or_b32 v{D+3}, v{D+4}, 8, v{D+3}")
    for sh in (8, 4, 2, 1):
        e.nop(2)
        e(f"v_or_b32_dpp v{D+3}, v{D+3}, v{D+3} row_ror:{sh} row_mask:0xf bank_mask:0xf")
    e(f"v_lshrrev_b32 v{D+4}, 8, v{D+3}")
    e(f"v_cmp_ne_u32 vcc, 0, v{D+3}")
    e(f"v_and_b32 v{D+3}, 0xff, v{D+3}")
    e(f"v_cmp_eq_u32 s[44:45], 1, v{T}")
    e(f"v_cmp_eq_u32 s[62:63], 0, v{D+3}")
    e(f"v_cmp_eq_u32 s[64:65], 0, v{D+4}")
    e(f"v_cndmask_b32 v{D+5}, v{D+3}, v{D+4}, s[44:45]")
    e(f"v_cmp_eq_u32 s[66:67], 0, v{D+5}")
    e("s_mov_b32 s59, 0")
    e("s_cbranch_vccz L_k2_nobase")
    e("s_lshl_b32 s54, s32, 4")
    e(f"v_add_u32 v{D+6}, s54, v{V_C}")
    e(f"v_mul_u32_u24 v{D+6}, {PSTR}, v{D+6}")
    e(f"v_lshl_add_u32 v{D+10}, v{D+3}, 4, v{D+6}")
    e(f"v_lshl_add_u32 v{D+11}, v{D+4}, 4, v{D+6}")
    e("s_lshl_b32 s54, s32, 1")
    e("s_add_u32 s54, s54, 64")
    e(f"v_lshrrev_b32 v{D+6}, 3, v{V_C}")
    e(f"v_add_u32 v{D+6}, s54, v{D+6}")
    e(f"v_mul_u32_u24 v{D+6}, {PSTR}, v{D+6}")
    e(f"v_and_b32 v{D+7}, 6, v{V_C}")
    e(f"v_lshl_add_u32 v{D+6}, v{D+7}, 1, v{D+6}")
    e(f"v_lshl_add_u32 v{D+12}, v{D+5}, 4, v{D+6}")
    for i in range(3):
        e(f"v_cndmask_b32 v{D+10+i}, v{D+10+i}, v{D+9}, s[{62+2*i}:{63+2*i}]")
    e(f"s_mov_b32 s54, {WS_PART + 144*128 - 16}")
    e(f"buffer_store_dwordx4 {vr(V_OUT,4)}, v{D+10}, {sr(SRD_WS,4)}, s54 offen sc1")
    e(f"buffer_store_dwordx4 {vr(V_OUT+4,4)}, v{D+11}, {sr(SRD_WS,4)}, s54 offen sc1")
    e(f"buffer_store_dword v{V_OUT+8}, v{D+12}, {sr(SRD_WS,4)}, s54 offen sc1")
    e("s_mov_b32 s59, 1")
    e.label("L_k2_nobase")
    e(f"v_cndmask_b32 v{D+10}, v{D+9}, v{V_XO}, s[62:63]")
    e(f"v_cndmask_b32 v{D+11}, v{D+9}, v{V_XO}, s[64:65]")
    e(f"v_cndmask_b32 v{D+12}, v{D+9}, v{V_XE}, s[66:67]")
    e(f"buffer_store_dwordx4 {vr(V_OUT,4)}, v{D+10}, {sr(SRD_OUT,4)}, 0 offen")
    e(f"buffer_store_dwordx4 {vr(V_OUT+4,4)}, v{D+11}, {sr(SRD_OUT,4)}, 0 offen offset:1152")
    e(f"buffer_store_dword v{V_OUT+8}, v{D+12}, {sr(SRD_OUT,4)}, 0 offen")
    e("s_cmp_ge_u32 s2, 144")
    e("s_cbranch_scc1 L_k2_reduce")

    e(f"v_lshrrev_b32 v{D}, 11, v{V_LC}")
    e(f"v_lshl_or_b32 v{D}, v{D}, 1, 1")
    e(f"v_lshlrev_b32 v{D}, 11, v{D}")
    e(f"v_ashrrev_i32 v{D+1}, 31, v{D}")
    e(f"v_not_b32 v{D+1}, v{D+1}")
    e(f"v_or_b32 v{D+1}, 0x80000000, v{D+1}")
    e(f"v_xor_b32 v{D}, v{D}, v{D+1}")
    e(f"v_mul_f32 v{D}, {f32bits(-math.log2(math.e)):#x}, v{D}")
    e(f"v_exp_f32 v{D}, v{D}")
    e(f"v_lshrrev_b32 v{D+1}, 1, v{V_C}")
    e(f"v_add_f32 v{D}, 1.0, v{D}")
    e(f"v_rcp_f32 v{D+13}, v{D}")
    e(f"v_xor_b32 v{D+1}, v{D+1}, v{V_G}")
    e(f"v_lshlrev_b32 v{D+1}, 4, v{D+1}")
    e(f"v_lshl_add_u32 v{D+1}, v{V_C}, 7, v{D+1}")
    e(f"v_add_u32 v{D+14}, {L_XS}, v{D+1}")
    e(f"v_xor_b32 v{D+15}, 64, v{D+14}")
    e(f"v_and_b32 v{D+1}, 1, v{V_G}")
    e(f"v_lshrrev_b32 v{D+2}, 1, v{V_G}")
    e(f"v_lshl_add_u32 v{D+2}, v{D+1}, 1, v{D+2}")
    e(f"v_mul_u32_u24 v{D+2}, {PSTR}, v{D+2}")
    e(f"v_lshl_add_u32 v{D+2}, v{D+8}, 4, v{D+2}")
    e(f"v_cndmask_b32 v{D+16}, v{D+9}, v{D+2}, s[60:61]")
    e(f"v_cmp_eq_u32 vcc, 0, v{D+1}")
    e(f"s_mul_i32 s55, s32, {18*PSTR}")
    e("s_lshl_b32 s56, s3, 7")
    e(f"v_cndmask_b32 v{D+17}, v{D+9}, v{D+16}, vcc")
    e("s_add_u32 s55, s55, s56")
    e(f"s_add_u32 s55, s55, {WS_PART}")
    e("s_mov_b32 s47, 0")
    e("s_cmp_eq_u32 s59, 1")
    e("s_waitcnt vmcnt(6)")
    e("s_cbranch_scc1 L_k2_ffn")
    e("s_waitcnt vmcnt(3)")
    e.label("L_k2_ffn")
    e("s_barrier")
    e.stamp(ST["rows"])
    G = D + 20
    e.ds_done = e.ds_n
    rt = []

    def xread(s):
        rt.append(e.ds(f"ds_read_b128 {vr(V_XF+4*s,4)}, v{D+14+(s&1)} offset:{2048*(s//2)}"))
    for s in range(6):
        xread(s)
    e(f"v_mov_b32 v{D+18}, 0")
    for s in range(18):
        e.wait(ds=rt[s])
        e(f"v_mfma_f32_16x16x32_bf16 {vr(G,4)}, {ar(A_WF+4*s,4)}, {vr(V_XF+4*s,4)}, {'0' if s == 0 else vr(G,4)}")
        if s + 6 < 18:
            xread(s + 6)
        x = V_XF + 4 * s
        if s >= 16:
            e(f"v_max3_u32 v{D+18}, v{D+18}, v{x}, v{x+1}")
            e(f"v_max3_u32 v{D+18}, v{D+18}, v{x+2}, v{x+3}")
        elif s % 2 == 1:
            e(f"v_max3_u32 v{D+18}, v{D+18}, v{x-4}, v{x}")
    e(f"v_cmp_eq_u32 vcc, -1, v{D+18}")
    e.nop(4)
    e("s_cbranch_vccnz L_k2_regather")
    e.label("L_k2_ffn2")
    e(f"v_permlane32_swap_b32 v{G}, v{G+2}")
    e(f"v_permlane32_swap_b32 v{G+1}, v{G+3}")
    e.nop(1)
    for i in range(2):
        e(f"v_mul_f32 v{G+4+i}, {f32bits(-math.log2(math.e)):#x}, v{G+i}")
    for i in range(2):
        e(f"v_exp_f32 v{G+4+i}, v{G+4+i}")
    for i in range(2):
        e(f"v_mul_f32 v{G+i}, v{G+i}, v{G+2+i}")
    for i in range(2):
        e(f"v_add_f32 v{G+4+i}, 1.0, v{G+4+i}")
    for i in range(2):
        e(f"v_rcp_f32 v{G+4+i}, v{G+4+i}")
    for i in range(2):
        e(f"v_mul_f32 v{G+i}, v{G+i}, v{D+13}")
    for i in range(2):
        e(f"v_mul_f32 v{G+i}, v{G+i}, v{G+4+i}")
    e(f"v_cvt_pk_bf16_f32 v{G}, v{G}, v{G+1}")
    e(f"ds_write_b32 v{V_AW}, v{G}")
    e("s_waitcnt lgkmcnt(0)")
    e("s_barrier")
    e(f"ds_read_b128 {vr(V_A,4)}, v{V_L16} offset:{L_A}")
    e("s_waitcnt lgkmcnt(0)")
    Y = V_XF
    for j in range(9):
        e(f"v_mfma_f32_16x16x32_bf16 {vr(Y+4*j,4)}, {ar(A_DF+4*j,4)}, {vr(V_A,4)}, 0")
    e.stamp(ST["ffn"])
    P = K
    for pr in range(5):
        a, b2 = Y + 8 * pr, (Y + 8 * pr + 4 if pr < 4 else Y + 8 * pr)
        p = P + 4 * pr
        if pr == 0:
            e.nop(1)
        e(f"v_cvt_pk_bf16_f32 v{p}, v{a}, v{a+1}")
        e(f"v_cvt_pk_bf16_f32 v{p+2}, v{b2}, v{b2+1}")
        e(f"v_cvt_pk_bf16_f32 v{p+1}, v{a+2}, v{a+3}")
        e(f"v_cvt_pk_bf16_f32 v{p+3}, v{b2+2}, v{b2+3}")
        e(f"v_permlane16_swap_b32 v{p}, v{p+2}")
        e.nop(1)
        e(f"v_permlane16_swap_b32 v{p+1}, v{p+3}")
        e(f"v_min_u32 v{p}, -2, v{p}")
        e(f"buffer_store_dwordx4 {vr(p,4)}, v{D+16+(pr==4)}, {sr(SRD_WS,4)}, s55 offen sc1")
        if pr < 4:
            e(f"s_add_u32 s55, s55, {4*PSTR}")
    e.stamp_flush(1, SRD_WS, 32, ST["end"] + 1, WS_STAMP)
    e("s_endpgm")
    e.label("L_k2_regather")
    e("s_add_u32 s47, s47, 1")
    e(f"s_cmp_ge_u32 s47, {SPIN}")
    e("s_cbranch_scc1 L_k2_ffn2")
    e("s_barrier")
    gather()
    e("s_waitcnt vmcnt(0)")
    e("s_branch L_k2_ffn")

    e.label("L_k2_reduce")
    e("s_cmp_ge_u32 s2, 216")
    e("s_cselect_b32 s54, 1, s32")
    e("s_cmp_lg_u32 s54, 0")
    e("s_cbranch_scc1 L_k2_done")
    e(f"v_lshl_add_u32 v{D}, v{D+8}, 2, s35")
    e("s_mov_b64 exec, s[60:61]")
    e(f"ds_write_b32 v{D}, v{V_LC} offset:64")
    e("s_mov_b64 exec, -1")
    e(f"v_and_b32 v{D}, 7, v{V_L}")
    e(f"v_lshl_add_u32 v{D}, v{D}, 2, s35")
    e(f"ds_read_b32 v{D+1}, v{D} offset:64")
    for q in range(4):
        e(f"v_cmp_eq_u32 s[62:63], {2*q}, v{V_C}")
        e(f"v_cmp_eq_u32 s[64:65], {2*q+1}, v{V_C}")
        e(f"v_mov_b32 v{D+2}, 0x3f80")
        e(f"v_cndmask_b32 v{V_A+q}, 0, v{D+2}, s[62:63]")
        e(f"v_cndmask_b32 v{V_A+q}, v{V_A+q}, 1.0, s[64:65]")
    e(f"v_cmp_gt_u32 vcc, 8, v{V_L}")
    e("s_sub_u32 s54, s2, 144")
    e(f"s_mul_i32 s55, s54, {PSTR}")
    e(f"v_cndmask_b32 v{D+3}, v{D+9}, v{V_L16}, vcc")
    e(f"s_add_u32 s55, s55, {WS_PART}")
    for i in range(1, 5):
        e(f"s_add_u32 s{55+i}, s55, {4096*i}")
    e("s_lshl_b32 s54, s54, 4")
    e(f"v_and_b32 v{D+4}, 40, v{V_L}")
    e(f"v_cmp_eq_u32 vcc, 0, v{D+4}")
    e("s_waitcnt lgkmcnt(0)")
    e(f"v_and_b32 v{D+1}, 0x7ff, v{D+1}")
    e(f"v_mul_u32_u24 v{D+1}, 1152, v{D+1}")
    e(f"v_lshl_add_u32 v{D+1}, v{V_G}, 3, v{D+1}")
    e(f"v_cndmask_b32 v{D+1}, v{D+9}, v{D+1}, vcc")
    e("s_mov_b32 s47, 0")
    e.stamp(ST["rows"])
    e.label("L_k2_rpoll")
    R = V_XF - 8
    for i in range(19):
        e(f"buffer_load_dwordx4 {vr(R+4*i,4)}, v{(V_L16 if i < 18 else D+3)}, {sr(SRD_WS,4)}, s{55+i//4} offen offset:{1024*(i%4)} sc1")
    e(f"v_mov_b32 v{D+5}, 0")
    S = D + 10
    for i in range(19):
        e(f"s_waitcnt vmcnt({18-i})")
        e(f"v_mfma_f32_16x16x32_bf16 {vr(S,4)}, {vr(V_A,4)}, {vr(R+4*i,4)}, {'0' if i == 0 else vr(S,4)}")
        x = R + 4 * i
        if i == 18:
            e(f"v_max3_u32 v{D+5}, v{D+5}, v{x}, v{x+1}")
            e(f"v_max3_u32 v{D+5}, v{D+5}, v{x+2}, v{x+3}")
        elif i % 2 == 1:
            e(f"v_max3_u32 v{D+5}, v{D+5}, v{x-4}, v{x}")
    e(f"v_cmp_eq_u32 vcc, -1, v{D+5}")
    e.nop(4)
    e("s_cbranch_vccz L_k2_rdone")
    spin_guard(e, "L_k2_rpoll")
    e.label("L_k2_rdone")
    e.stamp(ST["ffn"])
    e.nop(1)
    for i in range(4):
        e(f"v_add_f32_dpp v{S+i}, v{S+i}, v{S+i} row_ror:8 row_mask:0xf bank_mask:0xf")
    e(f"v_cvt_pk_bf16_f32 v{S}, v{S}, v{S+1}")
    e(f"v_cvt_pk_bf16_f32 v{S+1}, v{S+2}, v{S+3}")
    e(f"buffer_store_dwordx2 {vr(S,2)}, v{D+1}, {sr(SRD_OUT,4)}, s54 offen")
    e.stamp_flush(1, SRD_WS, 32, ST["end"] + 1, WS_STAMP)
    e.label("L_k2_done")
    e("s_endpgm")

    e.label("L_k2_selslow")
    e("s_mov_b32 s47, 0")
    e("s_add_u32 s54, s38, 4096")
    e.label("L_k2_poll2")
    for i in range(8):
        e(f"buffer_load_dwordx4 {vr(K+4*i,4)}, v{V_L16}, {sr(SRD_WS,4)}, s{38 if i < 4 else 54} offen offset:{1024*(i%4)} sc1")
    e("s_waitcnt vmcnt(0) lgkmcnt(0)")
    e(f"v_max_u32 v{D}, v{K}, v{K+1}")
    for i in range(2, 32, 2):
        e(f"v_max3_u32 v{D}, v{D}, v{K+i}, v{K+i+1}")
    e(f"v_cmp_gt_i32 vcc, 0, v{D}")
    e.nop(4)
    e("s_cbranch_vccz L_k2_polled2")
    spin_guard(e, "L_k2_poll2")
    e.label("L_k2_polled2")
    e("s_mov_b32 s52, -1")
    e("s_mov_b32 s53, 0")
    e(f"v_mov_b32 v{V_LC}, 0")
    e.label("L_k2_selround")
    for i in range(32):
        e(f"v_sub_u32 v{D+i}, s52, v{K+i}")
    e(f"v_min_u32 v{D}, v{D}, v{D+1}")
    for i in range(2, 32, 2):
        e(f"v_min3_u32 v{D}, v{D}, v{D+i}, v{D+i+1}")
    for sh in (8, 4, 2, 1):
        e.nop(2)
        e(f"v_min_u32_dpp v{D}, v{D}, v{D} row_ror:{sh} row_mask:0xf bank_mask:0xf")
    e.nop(1)
    for q in range(4):
        e(f"v_readlane_b32 s{54+q}, v{D}, {16*q}")
    e(f"v_cmp_eq_u32 vcc, s53, v{V_C}")
    e("s_min_u32 s54, s54, s55")
    e("s_min_u32 s56, s56, s57")
    e("s_min_u32 s54, s54, s56")
    e("s_sub_u32 s54, s52, s54")
    e(f"v_mov_b32 v{D}, s54")
    e(f"v_cndmask_b32 v{V_LC}, v{V_LC}, v{D}, vcc")
    e("s_sub_u32 s52, s54, 1")
    e("s_add_u32 s53, s53, 1")
    e("s_cmp_lt_u32 s53, 8")
    e("s_cbranch_scc1 L_k2_selround")
    e(f"ds_write_b32 v{V_LW}, v{V_LC}")
    e("s_branch L_k2_listed")


def slow_path(e):
    T = V_T
    e.label("L_k2_slow")
    e.wait_all()
    e("s_barrier")
    tok = {}
    kv_addr(e)
    load_xw(e, tok)
    for _, _, f in kv_ops(e, tok)[0]:
        f()
    zero_acc(e)
    e.wait_all()
    for op in init_acc_ops():
        e(op)
    e(f"v_lshlrev_b32 v{V_Y+9}, 2, v{V_L}")
    e(f"s_lshl_b32 s34, s32, 8")
    e(f"v_add_u32 v{V_Y+10}, s34, v{V_Y+9}")
    e("s_mov_b32 s43, 0")
    e("s_mov_b32 s45, 0")
    e.label("L_k2_slow_round")
    for op in load_q(e, 0):
        op()
    for a in (V_Q1O, V_Q1B, V_Q2O):
        e(f"v_add_u32 v{a}, 1152, v{a}")
    for j in range(9):
        if j % 2 == 0:
            e(f"s_add_u32 s39, s45, {(j//2)*4096}")
        wo_load(e, tok, 0, j, 0)
        wo_load(e, tok, 0, j, 1)
    e(f"v_mfma_f32_32x32x8_bf16 {ar(A_O[0],16)}, {vr(V_Z,2)}, {vr(V_Z,2)}, 0")
    m = V_Y + 8
    e(f"v_mov_b32 v{m}, 0xff800000")
    e.wait_all()
    s = V_S[0]
    for t in range(16):
        e(qk1(t, 0, 0))
        e(qk2(t, 0, 0))
        e.nop(12)
        for i in range(8):
            e(f"v_max3_f32 v{m}, v{m}, v{s+2*i}, v{s+2*i+1}")
    e(f"v_mov_b32 v{T}, v{m}")
    e.nop(2)
    e(f"v_permlane32_swap_b32 v{T}, v{m}")
    e.nop(2)
    e(f"v_max_f32 v{m}, v{m}, v{T}")
    e.ds(f"ds_write_b32 v{V_Y+10}, v{m} offset:{L_MX}")
    e.wait_all()
    e("s_barrier")
    for w in range(4):
        e.ds(f"ds_read_b32 v{T+w}, v{V_Y+9} offset:{L_MX+256*w}")
    e.wait_all()
    e(f"v_max3_f32 v{m}, v{T}, v{T+1}, v{T+2}")
    e(f"v_max_f32 v{m}, v{m}, v{T+3}")
    for t in range(16):
        e(qk1(t, 0, 0))
        e(qk2(t, 0, 0))
        e.nop(12)
        for i in range(16):
            e(f"v_sub_f32 v{s+i}, v{s+i}, v{m}")
        for i in range(16):
            e(f"v_exp_f32 v{s+i}, v{s+i}")
        e.nop(2)
        e(pv(t, 0, 0, 0))
        e(pv(t, 0, 0, 1))
    e.nop(12)
    for op in write_partials(e, 0):
        op()
    e.wait_all()
    e("s_barrier")
    for i in range(7):
        e(f"v_mov_b32 v{V_Y+i}, v{V_Y+i+1}")
    reduce_full(e, V_Y + 7)
    e.nop(2)
    for j in range(9):
        e(smf16(j, V_A, wo_reg(0, j)[0]))
    e.nop(8)
    e("s_add_u32 s43, s43, 1")
    e("s_add_u32 s45, s45, 73728")
    e("s_cmp_lt_u32 s43, 8")
    e("s_cbranch_scc1 L_k2_slow_round")
    for j in range(9):
        if j % 2 == 0:
            e(f"s_add_u32 s39, s45, {(j//2)*4096}")
        wo_load(e, tok, 0, j, 0)
        wo_load(e, tok, 0, j, 1)
    for i in range(4):
        e(f"v_cvt_pk_bf16_f32 v{V_A8+i}, v{V_Y+2*i}, v{V_Y+2*i+1}")
    e.wait_all()
    e.nop(2)
    for j in range(9):
        e(smf16(j, V_A8, wo_reg(0, j)[0]))
    e("s_branch L_k2_ln2")


def gen():
    e = Emit()
    tok = {}
    prologue(e, tok)
    mainloop(e, tok)
    final_proj(e, tok)
    ln2_tail(e)
    moe_tail(e, tok)
    slow_path(e)
    e.label("L_k2_end")
    e("s_endpgm")
    return kernel_head(NAME) + e.text(), descriptor(NAME, 512, 256)
```

```python
from asmlib import *
from layout import *
from k1 import code_prefetch

NAME3 = "ffn_kernel"
NAME4 = "fin_kernel"
L_G, L_U, L_D, L_R = 0, 40960, 81920, 118784
LDS3 = L_R + 16384
LDS4 = 4096


def gen3():
    e = Emit()
    V_L, V_C, V_G = 0, 2, 3
    T = 4
    KEY = 16
    D = 48
    XF = 80
    WF = 100
    ACC = 180
    DF = 196
    e("s_cmp_ge_u32 s2, 144")
    e("s_cbranch_scc1 L_k3_end")
    e.stamp(0)
    e("s_load_dwordx4 s[4:7], s[0:1], 56")
    e("s_load_dwordx2 s[8:9], s[0:1], 72")
    e("s_load_dwordx2 s[10:11], s[0:1], 96")
    code_prefetch(e, "L_k3_end", T, T + 11, "k3")
    e(f"v_lshrrev_b32 v1, 6, v0")
    e(f"v_and_b32 v{V_L}, 63, v0")
    e(f"v_readfirstlane_b32 s32, v1")
    e(f"v_and_b32 v{V_C}, 15, v{V_L}")
    e(f"v_lshrrev_b32 v{V_G}, 4, v{V_L}")
    e(f"v_lshlrev_b32 v{T}, 4, v{V_L}")
    e(f"v_lshrrev_b32 v{T+1}, 2, v{V_L}")
    e(f"v_and_b32 v{T+2}, 3, v{V_L}")
    e(f"v_lshrrev_b32 v{T+3}, 4, v{V_L}")
    e(f"v_and_b32 v{T+3}, 2, v{T+3}")
    e(f"v_xor_b32 v{T+2}, v{T+2}, v{T+3}")
    e(f"v_mul_u32_u24 v{T+1}, 9216, v{T+1}")
    e(f"v_lshl_add_u32 v{T+1}, v{T+2}, 4, v{T+1}")
    e("s_waitcnt lgkmcnt(0)")
    e.srd(16, 10, WS_BYTES)
    e.srd(20, 4, WF_BYTES)
    e.srd(24, 6, WF_BYTES)
    e.srd(28, 8, WF_BYTES)
    for i in range(8):
        if i % 4 == 0:
            e(f"s_mov_b32 s34, {WS_R + 1024*i}")
        ktok = e.vm(f"buffer_load_dwordx4 {vr(KEY+4*i,4)}, v{T}, s[16:19], s34 offen offset:{1024*(i%4)}")
    e("s_lshl_b32 s35, s2, 6")
    e("s_mul_i32 s36, s32, 10240")
    for i in range(5):
        e(f"s_add_u32 s37, s32, {4*i}")
        e("s_min_u32 s37, s37, 17")
        e(f"s_lshl_b32 s{50+i}, s37, 6")
        e(f"s_mul_i32 s37, s37, {32*9216}")
        e("s_add_u32 s37, s37, s35")
        e(f"s_add_u32 s38, s37, {16*9216}")
        for mat in range(2):
            for hh in range(2):
                e(f"s_add_u32 m0, s36, {(L_G, L_U)[mat] + 2048*i + 1024*hh}")
                e.nop(1)
                wtok = e.vm(f"buffer_load_dwordx4 v{T+1}, s[{20+4*mat}:{23+4*mat}], s{37+hh} offen lds")
    e("s_mul_i32 s37, s2, 36864")
    e("s_mul_i32 s38, s32, 9216")
    e("s_add_u32 s37, s37, s38")
    for i in range(9):
        e(f"s_add_u32 m0, s38, {L_D + 1024*i}")
        e.nop(1)
        dtok = e.vm(f"buffer_load_dwordx4 v{T}, s[28:31], s37 offen lds")
        e("s_add_u32 s37, s37, 1024")
    e.stamp(1)
    e.wait(vm=ktok)
    e.stamp(2)
    e("s_mov_b32 s33, -1")
    for r in range(8):
        for i in range(32):
            e(f"v_sub_u32 v{D+i}, s33, v{KEY+i}")
        e(f"v_min3_u32 v{D}, v{D}, v{D+1}, v{D+2}")
        for i in range(3, 31, 2):
            e(f"v_min3_u32 v{D}, v{D}, v{D+i}, v{D+i+1}")
        e(f"v_min_u32 v{D}, v{D}, v{D+31}")
        for sh in (8, 4, 2, 1):
            e.nop(2)
            e(f"v_min_u32_dpp v{D}, v{D}, v{D} row_ror:{sh} row_mask:0xf bank_mask:0xf")
        e.nop(1)
        for q in range(4):
            e(f"v_readlane_b32 s{40+q}, v{D}, {16*q}")
        e("s_min_u32 s40, s40, s41")
        e("s_min_u32 s42, s42, s43")
        e("s_min_u32 s40, s40, s42")
        e(f"s_sub_u32 s{60+r}, s33, s40")
        e(f"s_sub_u32 s33, s{60+r}, 1")
    e.stamp(3)
    e(f"v_and_b32 v{T+2}, 7, v{V_L}")
    e(f"v_mov_b32 v{T+3}, s60")
    for r in range(1, 8):
        e(f"v_cmp_eq_u32 vcc, {r}, v{T+2}")
        e(f"v_mov_b32 v{T+4}, s{60+r}")
        e.nop(1)
        e(f"v_cndmask_b32 v{T+3}, v{T+3}, v{T+4}, vcc")
    e(f"v_and_b32 v{T+4}, 0x7ff, v{T+3}")
    e(f"v_mul_u32_u24 v{T+4}, 1152, v{T+4}")
    e(f"v_lshl_add_u32 v{T+4}, v{V_G}, 4, v{T+4}")
    e(f"v_add_u32 v{T+4}, {WS_HN}, v{T+4}")
    e("s_cmp_ge_u32 s32, 2")
    e(f"s_cselect_b32 s34, {OOB}, 0")
    e(f"v_add_u32 v{T+5}, s34, v{T+4}")
    for i in range(5):
        xtok = e.vm(f"buffer_load_dwordx4 {vr(XF+4*i,4)}, v{T+4+(i==4)}, s[16:19], s{50+i} offen")
    e(f"v_lshlrev_b32 v{T+6}, 2, v{T+2}")
    e("s_or_b32 s34, s2, s32")
    e("s_cmp_eq_u32 s34, 0")
    e(f"s_cselect_b32 s34, 0, {WS_DUMP-WS_SEL}")
    e(f"s_add_u32 s34, s34, {WS_SEL}")
    e.vm(f"buffer_store_dword v{T+3}, v{T+6}, s[16:19], s34 offen")
    e(f"v_lshrrev_b32 v{T+6}, 2, v{V_C}")
    e(f"v_lshl_add_u32 v{T+7}, v{V_G}, 3, v{T+6}")
    e(f"v_lshlrev_b32 v{T+7}, 6, v{T+7}")
    e(f"v_and_b32 v{T+8}, 3, v{V_C}")
    e(f"v_lshl_add_u32 v{T+7}, v{T+8}, 3, v{T+7}")
    e(f"v_add_u32 v{T+7}, s36, v{T+7}")
    e(f"v_and_b32 v{T+9}, 1, v{V_G}")
    e(f"v_lshlrev_b32 v{T+9}, 5, v{T+9}")
    e(f"v_sub_u32 v{T+10}, v{T+7}, v{T+9}")
    e(f"v_add_u32 v{T+7}, v{T+7}, v{T+9}")
    e(f"v_lshl_add_u32 v{T+6}, v{V_G}, 2, v{T+6}")
    e(f"v_mul_u32_u24 v{T+6}, 1152, v{T+6}")
    e(f"v_lshl_add_u32 v{T+6}, v{T+8}, 3, v{T+6}")
    e("s_mul_i32 s34, s32, 288")
    e(f"s_add_u32 s34, s34, {L_D}")
    e(f"v_add_u32 v{T+6}, s34, v{T+6}")
    e.stamp(4)
    e.wait(vm=dtok)
    e("s_barrier")
    e.stamp(5)
    for i in range(5):
        for mat in range(2):
            for nt in range(2):
                for hh in range(2):
                    d = WF + 16 * i + 8 * mat + 4 * nt + 2 * hh
                    e.ds(f"ds_read_b64_tr_b16 {vr(d,2)}, v{T+7+3*nt} offset:{(L_G,L_U)[mat] + 2048*i + 256*hh + 32*nt}")
        e.wait(ds=e.ds_n)
    for j in range(9):
        for hh in range(2):
            e.ds(f"ds_read_b64_tr_b16 {vr(DF+4*j+2*hh,2)}, v{T+6} offset:{18432*hh + 32*j}")
        if j % 4 == 3:
            e.wait(ds=e.ds_n)
    e.wait(vm=xtok, ds=e.ds_n)
    e.stamp(6)
    for i in range(5):
        for a in range(4):
            c = "0" if i == 0 else vr(ACC + 4 * a, 4)
            e(f"v_mfma_f32_16x16x32_bf16 {vr(ACC+4*a,4)}, {vr(WF+16*i+4*a,4)}, {vr(XF+4*i,4)}, {c}")
    e("s_lshl_b32 s34, s32, 12")
    e(f"s_add_u32 s34, s34, {L_R}")
    e(f"v_add_u32 v{T+8}, s34, v{T}")
    e(f"v_add_u32 v{T+9}, {L_R}, v{T}")
    e.nop(8)
    for a in range(4):
        e.ds(f"ds_write_b128 v{T+8}, {vr(ACC+4*a,4)} offset:{1024*a}")
    e.wait(ds=e.ds_n)
    e("s_barrier")
    R = WF
    for w in range(4):
        for a in range(4):
            e.ds(f"ds_read_b128 {vr(R+16*w+4*a,4)}, v{T+9} offset:{4096*w+1024*a}")
        if w % 2 == 1:
            e.wait(ds=e.ds_n)
    for i in range(8):
        e(f"v_pk_add_f32 {vr(R+2*i,2)}, {vr(R+2*i,2)}, {vr(R+16+2*i,2)}")
        e(f"v_pk_add_f32 {vr(R+32+2*i,2)}, {vr(R+32+2*i,2)}, {vr(R+48+2*i,2)}")
    for i in range(8):
        e(f"v_pk_add_f32 {vr(R+2*i,2)}, {vr(R+2*i,2)}, {vr(R+32+2*i,2)}")
    for i in range(8):
        e(f"v_mul_f32 v{R+16+i}, {f32bits(-math.log2(math.e)):#x}, v{R+i}")
    for i in range(8):
        e(f"v_exp_f32 v{R+16+i}, v{R+16+i}")
    for i in range(8):
        e(f"v_add_f32 v{R+16+i}, 1.0, v{R+16+i}")
    for i in range(8):
        e(f"v_rcp_f32 v{R+16+i}, v{R+16+i}")
    for i in range(8):
        e(f"v_mul_f32 v{R+i}, v{R+i}, v{R+8+i}")
    for i in range(8):
        e(f"v_mul_f32 v{R+i}, v{R+i}, v{R+16+i}")
    for i in range(4):
        e(f"v_cvt_pk_bf16_f32 v{XF+i}, v{R+2*i}, v{R+2*i+1}")
    e(f"v_lshrrev_b32 v{T+8}, 1, v{V_G}")
    e(f"v_mul_u32_u24 v{T+8}, {144*256}, v{T+8}")
    e(f"v_and_b32 v{T+9}, 1, v{V_G}")
    e(f"v_lshl_add_u32 v{T+8}, v{T+9}, 4, v{T+8}")
    e(f"v_lshl_add_u32 v{T+8}, v{V_C}, 5, v{T+8}")
    e(f"v_cmp_gt_u32 vcc, 8, v{V_C}")
    e(f"v_mov_b32 v{T+9}, {OOB}")
    e(f"s_mul_i32 s34, s32, {18*144*256}")
    e(f"v_cndmask_b32 v{T+8}, v{T+9}, v{T+8}, vcc")
    e("s_lshl_b32 s35, s2, 8")
    e("s_add_u32 s34, s34, s35")
    e(f"s_add_u32 s34, s34, {WS_PART}")
    Y = KEY
    e.stamp(7)
    for j in range(9):
        e(f"v_mfma_f32_16x16x32_bf16 {vr(Y+4*j,4)}, {vr(DF+4*j,4)}, {vr(XF,4)}, 0")
    e.nop(8)
    for j in range(9):
        e.vm(f"buffer_store_dwordx4 {vr(Y+4*j,4)}, v{T+8}, s[16:19], s34 offen")
        e(f"s_add_u32 s34, s34, {2*144*256}")
    e.stamp_flush(2, 16, 32, 9, WS_STAMP)
    e.label("L_k3_end")
    e("s_endpgm")
    return kernel_head(NAME3) + e.text(), descriptor(NAME3, 232, 232)


def gen4():
    e = Emit()
    T = 4
    P = 16
    e("s_cmp_ge_u32 s2, 72")
    e("s_cbranch_scc1 L_k4_end")
    e.stamp(0)
    e("s_load_dwordx2 s[8:9], s[0:1], 80")
    e("s_load_dwordx2 s[10:11], s[0:1], 96")
    code_prefetch(e, "L_k4_end", T, T + 11, "k4")
    e(f"v_lshlrev_b32 v{T}, 4, v0")
    e(f"v_bfe_u32 v{T+1}, v0, 1, 3")
    e(f"v_lshlrev_b32 v{T+1}, 2, v{T+1}")
    e(f"s_mul_i32 s34, s2, {144*256}")
    e(f"s_add_u32 s34, s34, {WS_PART}")
    e(f"s_mov_b32 s35, {WS_SEL}")
    e("s_waitcnt lgkmcnt(0)")
    e.srd(16, 10, WS_BYTES)
    e.srd(20, 8, X_BYTES)
    ktok = e.vm(f"buffer_load_dword v{T+2}, v{T+1}, s[16:19], s35 offen")
    for i in range(9):
        ptok = e.vm(f"buffer_load_dwordx4 {vr(P+4*i,4)}, v{T}, s[16:19], s34 offen")
        e("s_add_u32 s34, s34, 4096")
    e.wait(vm=ktok)
    e(f"v_and_b32 v{T+3}, 0x7ff, v{T+2}")
    e(f"v_mul_u32_u24 v{T+3}, 1152, v{T+3}")
    e(f"v_and_b32 v{T+4}, 1, v0")
    e(f"v_lshl_add_u32 v{T+3}, v{T+4}, 3, v{T+3}")
    e("s_lshl_b32 s35, s2, 4")
    otok = e.vm(f"buffer_load_dwordx2 {vr(T+6,2)}, v{T+3}, s[20:23], s35 offen")
    e(f"v_and_b32 v{T+2}, 0xfffff800, v{T+2}")
    e(f"v_or_b32 v{T+2}, 0x400, v{T+2}")
    e(f"v_ashrrev_i32 v{T+4}, 31, v{T+2}")
    e(f"v_not_b32 v{T+4}, v{T+4}")
    e(f"v_or_b32 v{T+4}, 0x80000000, v{T+4}")
    e(f"v_xor_b32 v{T+2}, v{T+2}, v{T+4}")
    e(f"v_mul_f32 v{T+2}, {f32bits(-math.log2(math.e)):#x}, v{T+2}")
    e(f"v_exp_f32 v{T+2}, v{T+2}")
    e.nop(1)
    e(f"v_add_f32 v{T+2}, 1.0, v{T+2}")
    e(f"v_rcp_f32 v{T+2}, v{T+2}")
    e.stamp(1)
    e.wait(vm=ptok)
    e.stamp(2)
    for i in range(1, 9):
        for h in range(2):
            e(f"v_pk_add_f32 {vr(P+2*h,2)}, {vr(P+2*h,2)}, {vr(P+4*i+2*h,2)}")
    e.ds(f"ds_write_b128 v{T}, {vr(P,4)}")
    e(f"v_and_b32 v{T+5}, 0xf0, v{T}")
    e.wait(ds=e.ds_n)
    e("s_barrier")
    e("v_cmp_gt_u32 vcc, 16, v0")
    e("s_and_saveexec_b64 s[36:37], vcc")
    e("s_cbranch_execz L_k4_end")
    for i in range(16):
        e.ds(f"ds_read_b128 {vr(P+4*i,4)}, v{T+5} offset:{256*i}")
        if i % 8 == 7:
            e.wait(ds=e.ds_n)
    for i in range(1, 16):
        for h in range(2):
            e(f"v_pk_add_f32 {vr(P+2*h,2)}, {vr(P+2*h,2)}, {vr(P+4*i+2*h,2)}")
    e.wait(vm=otok)
    e(f"v_lshlrev_b32 v{P+4}, 16, v{T+6}")
    e(f"v_and_b32 v{P+5}, 0xffff0000, v{T+6}")
    e(f"v_lshlrev_b32 v{P+6}, 16, v{T+7}")
    e(f"v_and_b32 v{P+7}, 0xffff0000, v{T+7}")
    for i in range(4):
        e(f"v_fma_f32 v{P+i}, v{P+i}, v{T+2}, v{P+4+i}")
    e(f"v_cvt_pk_bf16_f32 v{P}, v{P}, v{P+1}")
    e(f"v_cvt_pk_bf16_f32 v{P+1}, v{P+2}, v{P+3}")
    e.vm(f"buffer_store_dwordx2 {vr(P,2)}, v{T+3}, s[20:23], s35 offen")
    e("s_mov_b32 s32, 0")
    e.stamp_flush(3, 16, 32, 4, WS_STAMP)
    e.label("L_k4_end")
    e("s_endpgm")
    return kernel_head(NAME4) + e.text(), descriptor(NAME4, 96, 96)
```

```python
import math
X_BYTES = 2048 * 576 * 2
WQ_BYTES = 576 * 576 * 2
WK_BYTES = 576 * 18 * 2
WF_BYTES = 576 * 4608 * 2
QSCALE = (18 ** -0.5) * math.log2(math.e)
MOFF = 32.0
MCONST = 0x0000C200
WS_Q = 0
WS_K1 = 0x240000
WS_K2 = WS_K1 + 0x10000
WS_V = WS_K2 + 0x4000
WS_MC = WS_V + 0x14000
WS_WO = WS_MC + 0x1000
WS_HN = WS_WO + 0xA2000
WS_R = WS_HN + 0x240000
WS_SEL = WS_R + 0x10000
WS_PART = WS_SEL + 0x1000
WS_DUMP = WS_PART + 0x300000
WS_STAMP = WS_DUMP + 0x20000
WS_BYTES = 0x1000000
OOB = 0x7F000000
assert WS_DUMP + 0x20000 <= WS_BYTES
import os
ST_FLAG = os.environ.get("ST_FLAG", "")
PSTR = 19456
SPIN = 200000
WS_FLAG = WS_DUMP
```

```python
import sys, os
sys.path.insert(0, os.path.dirname(os.path.abspath(__file__)))
import k1, k2, k3

REF = "sequential_preLN__grouped_kv_mqa__moe_arch_mod__prompt.s.ref"
OUT = "sequential_preLN__grouped_kv_mqa__moe_arch_mod__prompt.s"

def build(extra_launch=0):
    head = [l for l in open(REF).read().split("\n") if l.startswith(";") and "@launch" not in l and "Override launch" not in l and "grid=ceil" not in l]
    ks = [(k1.NAME, k1.gen(), 256, k1.LDS), (k2.NAME, k2.gen(), 256, k2.LDS)]
    for n, _, g, lds in ks:
        head.append(f"; @launch kernel={n} grid=({g},1,1) block=({512 if n == k1.NAME else 256},1,1) lds={lds}")
    s = "\n".join(head) + '\n.amdgcn_target "amdgcn-amd-amdhsa--gfx950"\n.text\n'
    for _, (code, _), _, _ in ks:
        s += code
    s += '.section .rodata,"a"\n'
    for _, (_, d), _, _ in ks:
        s += ".p2align 6\n" + d
    return s

if __name__ == "__main__":
    import asmlib
    if "--stamps" in sys.argv:
        asmlib.STAMPS[0] = True
        sys.argv.remove("--stamps")
    for a in list(sys.argv):
        if a.startswith("-D"):
            asmlib.OPT.add(a[2:]); sys.argv.remove(a)
    out = sys.argv[1] if len(sys.argv) > 1 else OUT
    open(out, "w").write(build())
    print("written", out)
```

```python
import struct


def f32bits(x):
    return struct.unpack("<I", struct.pack("<f", x))[0]


def vr(a, n=1, p="v"):
    return f"{p}{a}" if n == 1 else f"{p}[{a}:{a+n-1}]"


def ar(a, n=1):
    return vr(a, n, "a")


def sr(a, n=1):
    return vr(a, n, "s")


STAMPS = [False]
OPT = set()


class Emit:
    def __init__(self):
        self.lines = []
        self.vm_n = 0
        self.ds_n = 0
        self.vm_done = 0
        self.ds_done = 0

    def __call__(self, s):
        for l in s.strip("\n").split("\n"):
            l = l.strip()
            if not l:
                continue
            if l.endswith(":") or l.startswith("."):
                self.lines.append(l)
            else:
                self.lines.append("    " + l)

    def label(self, name):
        self.lines.append(name + ":")

    def comment(self, s):
        self.lines.append("    ; " + s)

    def vm(self, s):
        self(s)
        self.vm_n += 1
        assert self.vm_n - self.vm_done <= 63 + 64, "vm bookkeeping"
        return self.vm_n

    def ds(self, s):
        self(s)
        self.ds_n += 1
        return self.ds_n

    def wait_str(self, vm=None, ds=None):
        parts = []
        if vm is not None and vm > self.vm_done:
            n = self.vm_n - vm
            assert n >= 0
            if n <= 63:
                parts.append(f"vmcnt({n})")
                self.vm_done = vm
            else:
                parts.append("vmcnt(63)")
                self.vm_done = max(self.vm_done, self.vm_n - 63)
        if ds is not None and ds > self.ds_done:
            n = self.ds_n - ds
            assert n >= 0
            n = min(n, 15)
            parts.append(f"lgkmcnt({n})")
            self.ds_done = self.ds_n - n
        return ("s_waitcnt " + " ".join(parts)) if parts else None

    def wait(self, vm=None, ds=None):
        s = self.wait_str(vm, ds)
        if s:
            self(s)
        return s is not None

    def wait_all(self):
        self("s_waitcnt vmcnt(0) lgkmcnt(0)")
        self.vm_done = self.vm_n
        self.ds_done = self.ds_n

    def fork(self):
        return (self.vm_n, self.ds_n, self.vm_done, self.ds_done)

    def restore(self, st):
        self.vm_n, self.ds_n, self.vm_done, self.ds_done = st

    def nop(self, n):
        while n > 0:
            k = min(n, 16)
            self(f"s_nop {k-1}")
            n -= k

    def srd(self, d, base, size):
        self(f"s_mov_b32 s{d}, s{base}")
        self(f"s_mov_b32 s{d+1}, s{base+1}")
        self(f"s_mov_b32 s{d+2}, {size}")
        self(f"s_mov_b32 s{d+3}, 0x20000")

    def stamp(self, i):
        if STAMPS[0] and i is not None:
            self(f"s_memrealtime s[{76+2*i}:{77+2*i}]")

    cyc = False

    def cycstamp(self, i):
        if STAMPS[0]:
            self.cyc = True
            self(f"s_memtime s[{98+2*i}:{99+2*i}]")

    def stamp_flush(self, kid, srd, wave_s, n, off, sh=3):
        if not STAMPS[0]:
            return
        self("s_mov_b64 exec, -1")
        self("s_waitcnt vmcnt(0)")
        self.stamp(n - 1)
        self("s_waitcnt lgkmcnt(0)")
        self(f"s_lshl_b32 s74, s2, {sh}")
        self(f"s_add_u32 s74, s74, s{wave_s}")
        self("s_lshl_b32 s74, s74, 6")
        self(f"s_add_u32 s74, s74, {off + kid*131072}")
        self("s_mov_b64 exec, 1")
        self("v_mov_b32 v1, 0")
        if self.cyc:
            self("s_sub_u32 s98, s100, s98")
            self("v_mov_b32 v2, s98")
            self(f"buffer_store_dword v2, v1, s[{srd}:{srd+3}], s74 offen offset:60")
        for i in range(n):
            self(f"v_mov_b32 v2, s{76+2*i}")
            self(f"buffer_store_dword v2, v1, s[{srd}:{srd+3}], s74 offen offset:{4*i}")

    def text(self):
        return "\n".join(self.lines) + "\n"


def descriptor(name, vgpr, accum, sgpr=102):
    return f""".amdhsa_kernel {name}
  .amdhsa_next_free_vgpr {vgpr}
  .amdhsa_next_free_sgpr {sgpr}
  .amdhsa_accum_offset {accum}
  .amdhsa_group_segment_fixed_size 0
  .amdhsa_kernarg_size 104
  .amdhsa_user_sgpr_count 2
  .amdhsa_user_sgpr_kernarg_segment_ptr 1
  .amdhsa_system_sgpr_workgroup_id_x 1
.end_amdhsa_kernel
"""


def kernel_head(name):
    return f""".globl {name}
.p2align 8
.type {name},@function
{name}:
"""
```

```python
from asmlib import *
from layout import *
import pa

NAME = "sequential_preLN__grouped_kv_mqa__moe_arch_mod__prompt_kernel"

A_K1, A_K2, A_V = 0, 64, 80
A_O = (208, 224)
A_Q1 = (240, 244)
A_Q2 = (248, 252)
V_L = 0
V_XO = 1
V_IPV, V_IWO = 2, 3
V_Q1O, V_Q2O, V_WOO = 4, 5, 6
V_Q1A = (4, 255, 250, 251)
V_PW, V_PW2, V_PR1, V_PR2, V_AW, V_L16 = 7, 8, 9, 10, 11, 12
V_FLAG = 13
V_Z = 14
V_S = (16, 32, 48)
V_X = 64
V_Y = 136
V_ACC = 176
V_T = 212
V_A = 228
V_A8 = 232
V_E = 236
V_WR = 238
V_XE = 247
V_ST = 248
L_P = 0
L_A = 10240
L_ST = 11264
L_MX = 19456
L_Q = 20480
L_MC = L_ST
L_W = 29696
L_D = L_W + 73728
L_XS = L_D + 36864
L_LIST = L_MX
LDS = L_XS + 20480
V_GU = 248
SRD_G, SRD_U, SRD_D = 12, 68, 28

LO_BITS = f32bits(2.0 ** -80)
HI_BITS = f32bits(2.0 ** 100)

SRD_WS, SRD_X, SRD_OUT, SRD_WR = 16, 20, 24, 28


def qk1(t, rnd, sbuf):
    s = V_S[sbuf]
    return f"v_mfma_f32_32x32x16_bf16 {vr(s,16)}, {ar(A_K1+4*t,4)}, {ar(A_Q1[rnd&1],4)}, 0"


def qk2(t, rnd, sbuf):
    s = V_S[sbuf]
    return f"v_mfma_f32_32x32x8_bf16 {vr(s,16)}, {ar(A_K2+(t&~1),2)}, {ar(A_Q2[rnd&1]+2*(t&1),2)}, {vr(s,16)}"


def pv(t, rnd, sbuf, h):
    s = V_S[sbuf] + 8 * h
    return f"v_smfmac_f32_32x32x32_bf16 {ar(A_O[rnd&1],16)}, {ar(A_V+8*t+4*h,4)}, {vr(s,8)}, v{V_IPV}"


def wo_reg(ks, j):
    if ks < 8:
        return vr(V_X + 8 * j, 8), (lambda hf: vr(V_X + 8 * j + 4 * hf, 4))
    if j < 5:
        return vr(V_Y + 8 * j, 8), (lambda hf: vr(V_Y + 8 * j + 4 * hf, 4))
    b = A_V + 8 * (j - 5)
    return ar(b, 8), (lambda hf: ar(b + 4 * hf, 4))


def kv_ops(e, tok):
    ops = []

    def grp(g):
        b = 52 + 4 * g
        return [f"s_add_u32 s47, s46, {g}", "s_and_b32 s47, s47, 3", "s_add_u32 s47, s47, s34",
                f"s_lshl_b32 s{b}, s47, 12", f"s_lshl_b32 s{b+1}, s47, 10", f"s_mul_i32 s{b+2}, s47, 5120",
                f"s_add_u32 s{b}, s{b}, {WS_K1}", f"s_add_u32 s{b+1}, s{b+1}, {WS_K2}", f"s_add_u32 s{b+2}, s{b+2}, {WS_V}",
                f"s_add_u32 s{b+3}, s{b+2}, 2560"]

    def k1(t):
        def f():
            tok[("k1", t)] = e.vm(f"buffer_load_dwordx4 {ar(A_K1+4*t,4)}, v{V_L16}, {sr(SRD_WS,4)}, s{52+4*(t//4)} offen offset:{1024*(t%4)} sc1")
        return f

    def k2(g):
        def f():
            tok[("k2", g)] = e.vm(f"buffer_load_dwordx4 {ar(A_K2+4*g,4)}, v{V_L16}, {sr(SRD_WS,4)}, s{53+4*g} offen sc1")
        return f

    def v(t, h):
        def f():
            fr = 2 * t + h
            tok[("v", t)] = e.vm(f"buffer_load_dwordx4 {ar(A_V+4*fr,4)}, v{V_Y}, {sr(SRD_WS,4)}, s{54+4*(t//4)+((fr%8)//4)} offen offset:{640*(fr%4)} sc1")
        return f
    for t in range(16):
        if t % 4 == 0:
            ops.append(("k2", t // 4, k2(t // 4)))
        ops.append(("k1", t, k1(t)))
        if t >= 1:
            ops.append(("v", t - 1, v(t - 1, 0)))
            ops.append(("v", t - 1, v(t - 1, 1)))
    ops.append(("v", 15, v(15, 0)))
    ops.append(("v", 15, v(15, 1)))
    return ops, grp


def kv_addr(e):
    t = V_T
    e(f"v_and_b32 v{t+2}, 31, v{V_L}")
    e(f"v_lshrrev_b32 v{t+3}, 5, v{V_L}")
    e(f"v_cmp_gt_u32 s[44:45], 18, v{t+2}")
    e(f"v_and_b32 v{t+5}, 30, v{t+2}")
    e(f"v_cmp_eq_u32 s[48:49], 20, v{t+5}")
    e(f"v_mov_b32 v{t+5}, {OOB >> 4}")
    e(f"v_subrev_u32 v{t+4}, 2, v{t+2}")
    e(f"v_cndmask_b32 v{t+5}, v{t+5}, v{t+2}, s[44:45]")
    e(f"v_cndmask_b32 v{t+5}, v{t+5}, v{t+4}, s[48:49]")
    e(f"v_mul_u32_u24 v{t+4}, 320, v{t+3}")
    e(f"v_lshl_add_u32 v{V_Y}, v{t+5}, 4, v{t+4}")
    e("s_lshl_b32 s34, s32, 2")
    e("s_bfe_u32 s46, s2, 0x20003")


def load_q(e, rnd, dyn=None):
    b = rnd & 1
    o = 1152 * rnd
    ops = [
        lambda: e.ds(f"ds_read_b32 {ar(A_Q1[b]+0)}, v{V_Q1A[0]} offset:{o}"),
        lambda: e.ds(f"ds_read_b32 {ar(A_Q1[b]+1)}, v{V_Q1A[1]} offset:{o}"),
        lambda: e.ds(f"ds_read_b32 {ar(A_Q1[b]+2)}, v{V_Q1A[2]} offset:{o}"),
        lambda: e.ds(f"ds_read_b32 {ar(A_Q1[b]+3)}, v{V_Q1A[3]} offset:{o}"),
        lambda: e.ds(f"ds_read_b32 {ar(A_Q2[b])}, v{V_Q2O} offset:{o}"),
        lambda: e.ds(f"ds_read_b32 {ar(A_Q2[b]+3)}, v{V_Q2O} offset:{o}"),
    ]
    return ops


def load_xw(e, tok):
    s = V_S[1]
    e.vm(f"buffer_load_dwordx4 {vr(s,4)}, v{V_XO}, {sr(SRD_X,4)}, 0 offen")
    e.vm(f"buffer_load_dwordx4 {vr(s+4,4)}, v{V_XO}, {sr(SRD_X,4)}, 0 offen offset:1152")
    e.vm(f"buffer_load_ushort v{s+8}, v{V_XE}, {sr(SRD_X,4)}, 0 offen")
    tok["x"] = e.vm(f"buffer_load_ushort v{s+9}, v{V_XE}, {sr(SRD_X,4)}, 0 offen offset:1152")


def init_acc_ops():
    s = V_S[1]
    ops = []
    for j in range(8):
        for tk in range(2):
            src = s + 4 * tk + j // 2
            d = V_ACC + 4 * j + tk
            if j % 2 == 0:
                ops.append(f"v_lshlrev_b32 v{d}, 16, v{src}")
            else:
                ops.append(f"v_and_b32 v{d}, s43, v{src}")
    ops.append(f"v_lshlrev_b32 v{V_ACC+32}, 16, v{s+8}")
    ops.append(f"v_lshlrev_b32 v{V_ACC+33}, 16, v{s+9}")
    return ops


def zero_acc(e):
    e("s_mov_b32 s43, 0xffff0000")
    for j in range(9):
        e(f"v_mov_b32 v{V_ACC+4*j+2}, 0")
        e(f"v_mov_b32 v{V_ACC+4*j+3}, 0")


def write_partials(e, ob):
    o = A_O[ob]
    return [
        lambda: e.ds(f"ds_write_b128 v{V_PW}, {ar(o,4)}"),
        lambda: e.ds(f"ds_write_b128 v{V_PW}, {ar(o+4,4)} offset:1024"),
        lambda: e.ds(f"ds_write_b64 v{V_PW2}, {ar(o+8,2)}"),
    ]


def reduce_full(e, ecur):
    b = V_S[0]
    t = V_T
    tk = []
    tk.append(e.ds(f"ds_read2st64_b64 {vr(t+8,4)}, v{V_PR2} offset0:4 offset1:9"))
    tk.append(e.ds(f"ds_read2st64_b64 {vr(t+12,4)}, v{V_PR2} offset0:14 offset1:19"))
    for w in range(4):
        for pl in range(2):
            tk.append(e.ds(f"ds_read_b128 {vr(b+8*w+4*pl,4)}, v{V_L16} offset:{L_P + 2560*w + 1024*pl}"))
    e.wait(ds=tk[1])
    e(f"v_pk_add_f32 {vr(t+8,2)}, {vr(t+8,2)}, {vr(t+10,2)}")
    e(f"v_pk_add_f32 {vr(t+12,2)}, {vr(t+12,2)}, {vr(t+14,2)}")
    e(f"v_pk_add_f32 {vr(t+8,2)}, {vr(t+8,2)}, {vr(t+12,2)}")
    e(f"v_rcp_f32 v{t+10}, v{t+9}")
    e(f"v_subrev_u32 v{t+11}, {LO_BITS:#x}, v{t+9}")
    e(f"v_max_u32 v{V_FLAG}, v{V_FLAG}, v{t+11}")
    e(f"v_mul_f32 v{ecur}, v{t+8}, v{t+10}")
    e.wait(ds=tk[5])
    for i in range(4):
        e(f"v_pk_add_f32 {vr(b+2*i,2)}, {vr(b+2*i,2)}, {vr(b+8+2*i,2)}")
    e.wait(ds=tk[9])
    for i in range(4):
        e(f"v_pk_add_f32 {vr(b+16+2*i,2)}, {vr(b+16+2*i,2)}, {vr(b+24+2*i,2)}")
    for i in range(4):
        e(f"v_pk_add_f32 {vr(b+2*i,2)}, {vr(b+2*i,2)}, {vr(b+16+2*i,2)}")
    for i in range(4):
        e(f"v_pk_mul_f32 {vr(b+2*i,2)}, {vr(b+2*i,2)}, {vr(t+10,2)} op_sel_hi:[1,0]")
    for i in range(4):
        e(f"v_cvt_pk_bf16_f32 v{V_A+i}, v{b+2*i}, v{b+2*i+1}")


def smf16(j, areg, breg):
    return f"v_smfmac_f32_16x16x64_bf16 {vr(V_ACC+4*j,4)}, {vr(areg,4)}, {breg}, v{V_IWO}"


def wo_load(e, tok, ks, j, hf, so=39):
    _, part = wo_reg(ks, j)
    tok[("wo", ks, j)] = e.vm(f"buffer_load_dwordx4 {part(hf)}, v{V_WOO}, {sr(SRD_WS,4)}, s{so} offen offset:{2048*(j%2)+1024*hf} sc1")


def wo_base(e, ks, j, so=39):
    e(f"s_mov_b32 s{so}, {ks*73728 + (j//2)*4096}")


class _St(dict):
    def __missing__(self, k):
        return None


ST = _St()
NPRE = 9
NPRE2 = 16


def poll_flags(e, vaddrs, vdst, tag):
    e("s_cmp_lg_u32 s32, 0")
    e(f"s_cbranch_scc1 L_flagok_{tag}")
    e("s_mov_b32 s47, 0")
    e.label(f"L_flag_{tag}")
    for k, a in enumerate(vaddrs):
        e(f"buffer_load_dword v{vdst+k}, v{a}, {sr(SRD_WS,4)}, 0 offen sc1")
    e("s_waitcnt vmcnt(0)")
    if len(vaddrs) > 1:
        e(f"v_min_u32 v{vdst}, v{vdst}, v{vdst+1}")
    e(f"v_cmp_eq_u32 vcc, 0, v{vdst}")
    e(f"s_cbranch_vccz L_flagok_{tag}")
    if "nosleep" not in OPT:
        e("s_sleep 2")
    spin_guard(e, f"L_flag_{tag}")
    e.label(f"L_flagok_{tag}")
    e("s_barrier")


def prologue(e, tok):
    pa.phase_a(e, ST)
    e.label("L_join")
    e.stamp(ST["a_st"])
    e.vm_n += 1
    stores = e.vm_n
    e.vm_done = stores - 1
    e.ds_done = e.ds_n
    e("s_load_dwordx2 s[28:29], s[0:1], 48")
    e("s_load_dwordx2 s[24:25], s[0:1], 80")
    e("s_load_dwordx2 s[12:13], s[0:1], 56")
    e("s_load_dwordx2 s[68:69], s[0:1], 64")
    e("s_load_dwordx2 s[72:73], s[0:1], 72")
    t = V_T
    e(f"v_lshlrev_b32 v{V_L16}, 4, v{V_L}")
    e("s_lshl_b32 s34, s33, 10")
    e(f"s_add_u32 s34, s34, {WS_FLAG}")
    e(f"v_add_u32 v{t+8}, s34, v{V_L16}")
    e("s_lshl_b32 s4, s33, 5")
    e("s_lshr_b32 s34, s2, 3")
    e("s_add_u32 s4, s4, s34")
    e("s_mul_i32 s33, s4, 9216")
    e(f"v_lshrrev_b32 v{t}, 4, v{V_L}")
    e(f"v_mul_u32_u24 v{t}, 2304, v{t}")
    e(f"v_add_u32 v{t}, s33, v{t}")
    e(f"v_and_b32 v{t+1}, 15, v{V_L}")
    e("s_lshl_b32 s39, s32, 8")
    e(f"v_lshl_add_u32 v{t+6}, v{t+1}, 4, s39")
    e("s_lshl_b32 s39, s32, 5")
    e("s_add_u32 s39, s39, 1024")
    e(f"v_lshl_add_u32 v{t+7}, v{t+1}, 1, s39")
    e(f"v_add_u32 v{V_XO}, v{t}, v{t+6}")
    e(f"v_add_u32 v{V_XE}, v{t}, v{t+7}")
    load_xw(e, tok)
    kv_addr(e)
    ops, grp = kv_ops(e, tok)
    tok["kvops"] = ops
    for g in range(4):
        for x in grp(g):
            e(x)
    e("s_lshr_b32 s35, s4, 3")
    e("s_lshl_b32 s35, s35, 7")
    e(f"s_add_u32 s35, s35, {WS_FLAG + 8192}")
    e(f"v_min_u32 v{t+9}, 5, v{V_L}")
    e(f"v_lshl_add_u32 v{t+9}, v{t+9}, 4, s35")
    e(f"s_mov_b32 s{SRD_WR+2}, 1152")
    e(f"s_mov_b32 s{SRD_OUT+2}, {X_BYTES}")
    e("s_cmp_eq_u32 s32, 0")
    e(f"s_cselect_b32 s35, 0, {OOB}")
    e(f"v_or_b32 v{pa.V_FLAG}, s35, v{pa.V_FLAG}")
    e(f"v_mov_b32 v{t+11}, 1")
    e("s_waitcnt lgkmcnt(0)")
    s = V_S[2]
    e.vm(f"buffer_load_dwordx4 {vr(s,4)}, v{t+6}, {sr(SRD_WR,4)}, 0 offen")
    tok["wr"] = e.vm(f"buffer_load_ushort v{s+4}, v{t+7}, {sr(SRD_WR,4)}, 0 offen")
    e.wait(vm=stores)
    e("s_barrier")
    e.vm(f"buffer_store_dword v{t+11}, v{pa.V_FLAG}, {sr(SRD_WS,4)}, 0 offen sc1")
    e.stamp(ST["a_flag"])
    e("s_lshl_b32 s35, s32, 10")
    e("s_add_u32 s5, s33, s35")
    if WS_Q:
        e(f"s_add_u32 s5, s5, {WS_Q}")
    e(f"s_add_u32 s6, s5, 4096")
    e(f"s_add_u32 s7, s33, {WS_Q + 8192}")
    e(f"s_add_u32 s8, s35, {L_Q}")
    e("s_cmp_lt_u32 s2, 144" if "noffn" not in OPT else "s_cmp_lt_u32 s2, 0")
    e(f"s_cselect_b32 s{SRD_G+2}, {WF_BYTES}, 0")
    e(f"s_cselect_b32 s{SRD_U+2}, {WF_BYTES+1024}, 0")
    e(f"s_mov_b32 s{SRD_D+2}, s{SRD_G+2}")
    e(f"s_mov_b32 s{SRD_G+3}, 0x20000")
    e(f"s_mov_b32 s{SRD_U+3}, 0x20000")
    e(f"s_mov_b32 s{SRD_D}, s72")
    e(f"s_mov_b32 s{SRD_D+1}, s73")
    e(f"s_sub_u32 s{SRD_U}, s{SRD_U}, 1024")
    e(f"s_subb_u32 s{SRD_U+1}, s{SRD_U+1}, 0")
    e("s_and_b32 s3, s2, 7")
    e("s_mul_i32 s3, s3, 18")
    e("s_lshr_b32 s47, s2, 3")
    e("s_add_u32 s3, s3, s47")
    e("s_min_u32 s3, s3, 143")
    e(f"s_mul_i32 s48, s32, {16*9216}")
    e("s_lshl_b32 s47, s3, 6")
    e("s_add_u32 s48, s48, s47")
    e("s_mul_i32 s49, s3, 36864")
    e("s_mul_i32 s51, s32, 9216")
    e("s_add_u32 s49, s49, s51")
    e(f"s_add_u32 s51, s51, {L_D}")
    e("s_lshl_b32 s50, s32, 11")
    e(f"s_add_u32 s50, s50, {L_W}")
    e(f"v_lshrrev_b32 v{t}, 2, v{V_L}")
    e(f"v_and_b32 v{t+1}, 3, v{V_L}")
    e(f"v_bfe_u32 v{t+2}, v{V_L}, 5, 1")
    e(f"v_lshlrev_b32 v{t+2}, 1, v{t+2}")
    e(f"v_xor_b32 v{t+1}, v{t+1}, v{t+2}")
    e(f"v_mul_u32_u24 v{t}, 9216, v{t}")
    e(f"v_lshl_add_u32 v{V_GU}, v{t+1}, 4, v{t}")
    e(f"s_add_u32 s36, s5, {WS_HN - WS_Q}")
    e(f"s_add_u32 s37, s6, {WS_HN - WS_Q}")
    e(f"s_add_u32 s38, s7, {WS_HN - WS_Q}")
    e("s_lshl_b32 s44, s2, 2")
    e("s_add_u32 s44, s44, s32")
    e("s_lshl_b32 s44, s44, 10")
    e(f"s_add_u32 s44, s44, {WS_PART}")
    e("s_lshl_b32 s45, s32, 8")
    e("s_add_u32 s45, s45, s2")
    e("s_add_u32 s45, s45, 768")
    e(f"s_cmp_lt_u32 s45, {72*19}")
    e(f"s_cselect_b32 s47, 0, {OOB}")
    e(f"v_add_u32 v{V_GU+1}, s47, v{V_L16}")
    e("s_lshl_b32 s45, s45, 10")
    e(f"s_add_u32 s45, s45, {WS_PART}")
    e("s_cmp_eq_u32 s32, 0")
    e("s_cselect_b32 s38, s38, s45")
    e(f"v_and_b32 v{t}, 7, v{V_L}")
    e(f"v_mul_u32_u24 v{t}, 1152, v{t}")
    e(f"v_mov_b32 v{t+1}, {MCONST:#x}")
    e.ds(f"ds_write_b32 v{t}, v{t+1} offset:{L_MC}")
    e(f"v_bfe_u32 v{t}, v{V_L}, 2, 2")
    e(f"v_and_b32 v{t+1}, 1, v{V_L}")
    e(f"v_lshl_add_u32 v{t}, v{t}, 1, v{t+1}")
    e(f"v_lshlrev_b32 v{t}, 4, v{t}")
    e(f"v_add_u32 v{t}, {L_Q}, v{t}")
    e(f"v_bfe_u32 v{t+1}, v{V_L}, 4, 1")
    e(f"v_bfe_u32 v{t+2}, v{V_L}, 1, 1")
    e(f"v_lshl_add_u32 v{t+1}, v{t+1}, 1, v{t+2}")
    e(f"v_mul_u32_u24 v{t+1}, 9, v{t+1}")
    e(f"v_lshrrev_b32 v{t+3}, 5, v{V_L}")
    e(f"v_cmp_eq_u32 vcc, 0, v{t+3}")
    e(f"v_lshl_add_u32 v{t+3}, v{t+3}, 2, v{t+1}")
    for (dst, add, src) in [(V_Q1A[k], k, t + 3) for k in range(4)] + [(V_Q2O, 8, t + 1)]:
        e(f"v_add_u32 v{t+4}, {add}, v{src}")
        e(f"v_lshrrev_b32 v{t+5}, 2, v{t+4}")
        e(f"v_and_b32 v{t+4}, 3, v{t+4}")
        e(f"v_lshl_add_u32 v{t+4}, v{t+4}, 2, v{t}")
        e(f"v_lshl_add_u32 v{dst}, v{t+5}, 7, v{t+4}")
    e(f"v_mov_b32 v{t+4}, {L_MC}")
    e(f"v_cndmask_b32 v{V_Q2O}, v{t+4}, v{V_Q2O}, vcc")
    e(f"v_mul_u32_u24 v{V_IWO}, 0xaaaa, v{t+2}")
    e(f"v_add_u32 v{V_IWO}, 0x4444, v{V_IWO}")
    e(f"v_mov_b32 v{V_IPV}, 0xdddd")
    e(f"v_mov_b32 v{V_FLAG}, 0")
    e(f"v_mov_b32 v{V_Z}, 0")
    e(f"v_mov_b32 v{V_Z+1}, 0")
    for b in range(2):
        e(f"v_accvgpr_write_b32 {ar(A_Q2[b]+1)}, 0")
        e(f"v_accvgpr_write_b32 {ar(A_Q2[b]+2)}, 0")
    e(f"v_mfma_f32_32x32x8_bf16 {ar(A_O[0],16)}, {vr(V_Z,2)}, {vr(V_Z,2)}, 0")
    e(f"v_mfma_f32_32x32x8_bf16 {ar(A_O[1],16)}, {vr(V_Z,2)}, {vr(V_Z,2)}, 0")
    e(f"s_mul_i32 s34, s32, 18432")
    e(f"s_add_u32 s34, s34, {WS_WO}")
    e(f"v_bfe_u32 v{t}, v{V_L}, 2, 2")
    e(f"v_lshl_add_u32 v{V_WOO}, v{t}, 8, s34")
    e(f"v_lshrrev_b32 v{t}, 4, v{V_L}")
    e(f"v_lshl_add_u32 v{V_WOO}, v{t}, 6, v{V_WOO}")
    e(f"v_and_b32 v{t}, 3, v{V_L}")
    e(f"v_lshl_add_u32 v{V_WOO}, v{t}, 4, v{V_WOO}")
    e(f"s_mul_i32 s34, s32, 2560")
    e(f"v_add_u32 v{V_PW}, s34, v{V_L16}")
    e(f"v_lshlrev_b32 v{V_PR2}, 3, v{V_L}")
    e(f"s_add_u32 s34, s34, 2048")
    e(f"v_add_u32 v{V_PW2}, s34, v{V_PR2}")
    e("s_lshr_b32 s34, s32, 1")
    e("s_lshl_b32 s34, s34, 10")
    e("s_and_b32 s35, s32, 1")
    e("s_lshl_b32 s35, s35, 3")
    e("s_add_u32 s34, s34, s35")
    e(f"v_add_u32 v{V_PR1}, s34, v{V_L16}")
    e("s_lshl_b32 s34, s32, 2")
    e(f"s_add_u32 s34, s34, {L_A}")
    e(f"v_add_u32 v{V_AW}, s34, v{V_L16}")
    zero_acc(e)
    for i in range(4):
        e(f"v_mov_b32 v{V_A+i}, -1")
    e(f"s_mov_b32 s42, {LO_BITS:#x}")
    e.wait(vm=tok["wr"])
    for op in init_acc_ops():
        e(op)
    for j in range(8):
        if j % 2 == 0:
            e(f"v_lshlrev_b32 v{V_WR+j}, 16, v{s+j//2}")
        else:
            e(f"v_and_b32 v{V_WR+j}, s43, v{s+j//2}")
    e(f"v_lshlrev_b32 v{V_WR+8}, 16, v{s+4}")
    sw = V_ST + 6
    e(f"v_add_f32 v{sw}, v{V_WR}, v{V_WR+1}")
    for j in range(2, 9):
        e(f"v_add_f32 v{sw}, v{sw}, v{V_WR+j}")
    e("s_mov_b32 m0, s8")
    e.stamp(ST["a_set"])
    if "split" in OPT:
        poll_flags(e, [t + 8], t + 10, "kv")
        for k in range(NPRE):
            ops[k][2]()
        e.stamp(ST["a_kv"])
        poll_flags(e, [t + 9], t + 10, "q")
    else:
        e.stamp(ST["a_kv"])
        poll_flags(e, [t + 8, t + 9], t + 10, "q")
    e.stamp(ST["a_q"])
    e.vm(f"buffer_load_dwordx4 v{V_L16}, {sr(SRD_WS,4)}, s5 offen sc1 lds")
    e("s_add_u32 m0, s8, 4096")
    e.nop(1)
    e.vm(f"buffer_load_dwordx4 v{V_L16}, {sr(SRD_WS,4)}, s6 offen sc1 lds")
    e(f"s_mov_b32 m0, {L_Q + 8192}")
    e.nop(1)
    tok["qdma"] = e.vm(f"buffer_load_dwordx4 v{V_L16}, {sr(SRD_WS,4)}, s7 offen sc1 lds")
    n2 = NPRE2 if "split" in OPT else NPRE
    for k in range(NPRE if "split" in OPT else 0, n2):
        ops[k][2]()
    tok["npre"] = n2
    e.wait(vm=tok["qdma"], ds=e.ds_n)
    e("s_barrier")
    for op in load_q(e, 0):
        q0 = op()
    for op in load_q(e, 1):
        op()
    e.wait(vm=tok[("k1", 0)], ds=q0)
    e(qk1(0, 0, 0))
    e(qk2(0, 0, 0))
    e.wait(ds=e.ds_n)
    e.nop(10)


def step_order():
    o = []
    for t in range(12):
        o += [(0, t), (1, t)]
    o += [(0, t) for t in range(12, 16)] + [(1, t) for t in range(12, 16)]
    for r in range(2, 8):
        o += [(r, t) for t in range(16)]
    return o


def mainloop(e, tok):
    T = V_T
    order = step_order()
    ex = [dict(A=[], B=[], C=[], D=[], M=[], V={}) for _ in range(131)]

    def add(tau, pos, f):
        ex[tau][pos].append(f)

    def valu(tau, at, ops):
        ex[tau]["V"].setdefault(at, []).extend(ops)

    ops = tok["kvops"][tok["npre"]:]
    for k, (_, _, f) in enumerate(ops):
        add(k // 2, "C" if k % 2 == 0 else "D", f)
    kv_last = (len(ops) - 1) // 2
    for tau in range(0, 29):
        def w(tau=tau):
            need = [tok[("k1", order[tau + 2][1])]]
            if tau >= 1:
                need.append(tok[("v", order[tau - 1][1])])
            e.wait(vm=max(need))
        add(tau, "A", w)
    for r in range(2, 8):
        q = load_q(e, r)
        if r == 2:
            pos = [(27, "B"), (27, "C"), (27, "D"), (28, "C"), (28, "D"), (28, "D")]
        else:
            b = 28 if r == 3 else 16 * (r - 1)
            pos = [(b + 6, "C"), (b + 6, "C"), (b + 6, "D"), (b + 6, "D"), (b + 7, "D"), (b + 8, "D")]
        for k in range(6):
            add(pos[k][0], pos[k][1], q[k])
        add(16 * r - 2, "D", lambda: e.wait(ds=e.ds_n))
    def frag(ks, j, tau, so=40):
        add(tau, "A", lambda: wo_base(e, ks, j, so))
        add(tau, "C", lambda: wo_load(e, tok, ks, j, 0, so))
        add(tau, "D", lambda: wo_load(e, tok, ks, j, 1, so))
    for j in range(9):
        frag(0, j, kv_last + 1 + j)
    for j in range(5):
        frag(8, j, ((44, 54, 70, 86, 102) if "ffn_e" not in OPT else (44, 69, 70, 86, 102))[j])
    for j in range(5, 9):
        frag(8, j, 110 + j)
    CL = " nt" if "clr_nt" in OPT else ""
    for k, so in enumerate((36, 37, 44, 38)):
        add(27 + k, "B" if k >= 2 else "A", lambda so=so: e.vm(f"buffer_store_dwordx4 {vr(V_A,4)}, v{V_GU+1 if so == 38 else V_L16}, {sr(SRD_WS,4)}, s{so} offen sc1{CL}") if "noclr" not in OPT else None)
    FL = " nt"

    def gu(i, tau):
        add(tau, "A", lambda: e(f"s_add_u32 m0, s50, {8192*i}"))
        add(tau, "C", lambda: e.vm(f"buffer_load_dwordx4 v{V_GU}, {sr(SRD_G,4)}, s48 offen{FL} lds"))
        add(tau, "D", lambda: tok.__setitem__("ffn", e.vm(f"buffer_load_dwordx4 v{V_GU}, {sr(SRD_U,4)}, s48 offen offset:1024{FL} lds")))
        add(tau, "D", lambda: e(f"s_add_u32 s48, s48, {64*9216}"))

    def dn(i0, n, tau):
        add(tau, "A", lambda: e(f"s_add_u32 m0, s51, {1024*i0}"))
        for k in range(n):
            add(tau, "CD"[k % 2], lambda k=k: tok.__setitem__("ffn", e.vm(f"buffer_load_dwordx4 v{V_L16}, {sr(SRD_D,4)}, s49 offen offset:{1024*k}{FL} lds")))
        add(tau, "D", lambda: e(f"s_add_u32 s49, s49, {1024*n}"))
    sched = {
        "a": ((31, 64, 65, 80, 81, 96, 97, 127, 128), (32, 66, 82, 98), 112),
        "b": ((31, 64, 65, 80, 81, 96, 112, 127, 128), (32, 33, 97, 98), 113),
        "c": ((31, 64, 68, 80, 84, 96, 100, 127, 128), (32, 65, 81, 97), 112),
        "d": ((20, 31, 64, 80, 96, 112, 127, 128, 129), (32, 65, 81, 97), 113),
        "e": ((12, 31, 54, 64, 80, 96, 112, 127, 128), (32, 65, 81, 97), 113),
    }[next((o[4:] for o in OPT if o.startswith("ffn_")), "a")]
    ev = sorted([(tau, "g") for tau in sched[0]] + [(tau, "d") for tau in sched[1]] + [(sched[2], "e")])
    gi = di = 0
    for tau, kind in ev:
        if kind == "g":
            gu(gi, tau); gi += 1
        else:
            n = 2 if kind == "d" else 1
            dn(di, n, tau); di += n
    for p in range(7):
        b = {0: 28, 1: 38}.get(p, 16 * (p + 1))
        wr = write_partials(e, p & 1)
        add(b + 1, "C", wr[0]); add(b + 1, "D", wr[1]); add(b + 2, "A", wr[2])
        add(b + 2, "D", lambda: e.wait(ds=e.ds_n)); add(b + 2, "D", lambda: e("s_barrier"))
        add(b + 3, "A", lambda: e.ds(f"ds_read2st64_b64 {vr(T+8,4)}, v{V_PR2} offset0:4 offset1:9"))
        add(b + 3, "C", lambda: e.ds(f"ds_read2st64_b64 {vr(T+12,4)}, v{V_PR2} offset0:14 offset1:19"))
        add(b + 3, "D", lambda: e.ds(f"ds_read2st64_b64 {vr(T,4)}, v{V_PR1} offset0:0 offset1:5"))
        add(b + 4, "A", lambda: e.ds(f"ds_read2st64_b64 {vr(T+4,4)}, v{V_PR1} offset0:10 offset1:15"))
        if p < 6:
            ex[b + 3]["M"].append((f"v_mfma_f32_32x32x8_bf16 {ar(A_O[p&1],16)}, {vr(V_Z,2)}, {vr(V_Z,2)}, 0", [], 3))
        add(b + 4, "C", lambda: e.wait(ds=e.ds_n - 1))
        valu(b + 4, 11, [f"v_pk_add_f32 {vr(T+8,2)}, {vr(T+8,2)}, {vr(T+10,2)}",
                         f"v_pk_add_f32 {vr(T+12,2)}, {vr(T+12,2)}, {vr(T+14,2)}",
                         f"v_pk_add_f32 {vr(T,2)}, {vr(T,2)}, {vr(T+2,2)}",
                         f"v_pk_add_f32 {vr(T+8,2)}, {vr(T+8,2)}, {vr(T+12,2)}"])
        add(b + 4, "D", lambda: e.wait(ds=e.ds_n))
        valu(b + 4, 13, [f"v_rcp_f32 v{T+10}, v{T+9}", f"v_subrev_u32 v{T+11}, s42, v{T+9}"])
        valu(b + 4, 15, [f"v_pk_add_f32 {vr(T+4,2)}, {vr(T+4,2)}, {vr(T+6,2)}",
                         f"v_mul_f32 v{V_E+(p&1)}, v{T+8}, v{T+10}",
                         f"v_max_u32 v{V_FLAG}, v{V_FLAG}, v{T+11}",
                         f"v_pk_add_f32 {vr(T,2)}, {vr(T,2)}, {vr(T+4,2)}"])
        valu(b + 5, 1, [f"v_mul_f32 v{T}, v{T}, v{T+10}", f"v_mul_f32 v{T+1}, v{T+1}, v{T+10}"])
        valu(b + 5, 3, [f"v_cvt_pk_bf16_f32 v{T}, v{T}, v{T+1}"])
        if p & 1:
            valu(b + 5, 5, [f"v_cvt_pk_bf16_f32 v{V_A8+p//2}, v{V_E}, v{V_E+1}"])
        add(b + 5, "C", lambda: e.ds(f"ds_write_b32 v{V_AW}, v{T}"))
        add(b + 5, "D", lambda: e.wait(ds=e.ds_n)); add(b + 5, "D", lambda: e("s_barrier"))
        add(b + 6, "A", lambda: tok.__setitem__("afrag", e.ds(f"ds_read_b128 {vr(V_A,4)}, v{V_L16} offset:{L_A}")))
        for j in range(9):
            tau = b + 7 + j
            add(tau, "A", lambda j=j, p=p: e.wait(vm=tok[("wo", p, j)], ds=tok["afrag"]))
            if j % 2 == 0:
                add(tau - 1, "D", lambda j=j, p=p: wo_base(e, p + 1, j))
            sh = [lambda j=j, p=p: wo_load(e, tok, p + 1, j, 0), lambda j=j, p=p: wo_load(e, tok, p + 1, j, 1)]
            if "wo_cd" in OPT:
                add(tau, "C", sh.pop())
            ex[tau]["M"].append((smf16(j, V_A, wo_reg(p, j)[0]), sh, 1))

    e(".p2align 3")
    for tau in range(128):
        x = ex[tau]
        segs = []
        if tau < 127:
            rn, tn = order[tau + 1]
            segs.append([qk1(tn, rn, (tau + 1) % 3), x["A"], 4])
            segs.append([qk2(tn, rn, (tau + 1) % 3), x["B"], 4])
        else:
            segs.append([None, x["A"], 4]); segs.append([None, x["B"], 4])
        if tau > 0:
            rp, tp = order[tau - 1]
            segC = [pv(tp, rp, (tau - 1) % 3, 0), x["C"], 4]
            segD = [pv(tp, rp, (tau - 1) % 3, 1), x["D"], 4]
        else:
            segC = [None, x["C"], 4]; segD = [None, x["D"], 4]
        ms = [m for m in x["M"] if m[2] == 1]
        mz = [m for m in x["M"] if m[2] != 1]
        assert len(ms) <= 1 and len(mz) <= 1
        if ms:
            segs[0][2] = 3
            segs.insert(1, [ms[0][0], ms[0][1], 1])
        if mz:
            segs[0][2] = 3; segC[2] = 3; segD[2] = 3
            segs += [segC, [mz[0][0], mz[0][1], 2 if ms else 3], segD]
        else:
            segs += [segC, segD]
        assert sum(s[2] for s in segs) == 16
        assert not (mz and x["V"]), tau
        if tau == 0:
            e.stamp(ST["loop"])
            e.cycstamp(0)
        i = 0
        sb = V_S[tau % 3]
        for m, sh, n in segs:
            if m:
                e(m)
            for f in sh:
                f()
            for _ in range(n):
                e(f"v_exp_f32 v{sb+i}, v{sb+i}")
                for op in x["V"].get(i, []):
                    e(op)
                i += 1
    e(pv(15, 7, 127 % 3, 0))
    e.nop(1)
    e(pv(15, 7, 127 % 3, 1))
    n0 = len(e.lines)
    for x in ex[128:]:
        for f in x["A"]:
            f()
            e.nop(1)
        for f in x["C"] + x["D"]:
            f()
    e.nop(max(12 - (len(e.lines) - n0), 0))


def final_proj(e, tok):
    e.stamp(ST["fin"])
    e.cycstamp(1)
    for op in write_partials(e, 1):
        op()
    e.wait(ds=e.ds_n)
    e("s_barrier")
    reduce_full(e, V_E + 1)
    e(f"v_cvt_pk_bf16_f32 v{V_A8+3}, v{V_E}, v{V_E+1}")
    e(f"v_cmp_lt_u32 vcc, {HI_BITS-LO_BITS:#x}, v{V_FLAG}")
    e.wait(vm=tok[("wo", 8, 8)])
    e("s_cbranch_vccnz L_k2_slow")
    for j in range(9):
        e(smf16(j, V_A8, wo_reg(8, j)[0]))
    for j in range(9):
        if j % 3 == 0:
            e.wait(vm=tok[("wo", 7, j + 2)])
        e(smf16(j, V_A, wo_reg(7, j)[0]))


def ln2_tail(e):
    st = V_ST
    T = V_T
    e.label("L_k2_ln2")
    e.stamp(ST["ln2"])
    e(f"s_lshl_b32 s34, s32, 11")
    e(f"s_add_u32 s34, s34, {L_ST}")
    e(f"v_add_u32 v{T+14}, s34, v{V_L16}")
    e(f"v_lshrrev_b32 v{T+12}, 3, v{V_L}")
    e(f"v_and_b32 v{T+12}, 6, v{T+12}")
    e(f"s_lshl_b32 s34, s4, 3")
    e(f"v_add_u32 v{T+12}, s34, v{T+12}")
    e(f"v_and_b32 v{T+13}, 7, v{V_L}")
    H = lambda j: vr(V_ACC + 4 * j, 2)
    N = lambda j: vr(V_ACC + 4 * j + 2, 2)
    for j in range(9):
        e(f"v_pk_add_f32 {H(j)}, {H(j)}, {N(j)}")
        if j == 1:
            e(f"v_pk_mul_f32 {vr(st+2,2)}, {H(0)}, {H(0)}")
            e(f"v_pk_mul_f32 {vr(st+4,2)}, {H(0)}, {vr(V_WR,2)} op_sel_hi:[1,0]")
            e(f"v_pk_add_f32 {vr(st,2)}, {H(0)}, {H(1)}")
        if j >= 1:
            if j >= 2:
                e(f"v_pk_add_f32 {vr(st,2)}, {vr(st,2)}, {H(j)}")
            e(f"v_pk_fma_f32 {vr(st+2,2)}, {H(j)}, {H(j)}, {vr(st+2,2)}")
            sel = f"op_sel:[0,{j&1},0] op_sel_hi:[1,{j&1},1]"
            e(f"v_pk_fma_f32 {vr(st+4,2)}, {H(j)}, {vr(V_WR+(j&~1),2)}, {vr(st+4,2)} {sel}")
    e(f"v_and_b32 v{T+11}, 8, v{V_L}")
    for sh in (8, 4, 2, 1):
        for i in range(7):
            e(f"v_add_f32_dpp v{st+i}, v{st+i}, v{st+i} row_ror:{sh} row_mask:0xf bank_mask:0xf")
    e.ds(f"ds_write_b128 v{T+14}, {vr(st,4)}")
    e.ds(f"ds_write_b128 v{T+14}, {vr(st+4,4)} offset:1024")
    e(f"v_cmp_ne_u32 vcc, 0, v{T+11}")
    e("s_lshl_b32 s34, s4, 4")
    e(f"s_add_u32 s34, s34, {WS_R}")
    e(f"v_lshl_add_u32 v{T+13}, v{T+13}, 13, s34")
    e(f"v_mov_b32 v{T+10}, 1")
    e("s_movk_i32 s41, 1152")
    e.wait(ds=e.ds_n)
    e("s_barrier")
    b = V_S[0]
    tk = []
    for w in range(4):
        for pl in range(2):
            tk.append(e.ds(f"ds_read_b128 {vr(b+8*w+4*pl,4)}, v{V_L16} offset:{L_ST + 2048*w + 1024*pl}"))
    e(f"s_mov_b32 s34, {f32bits(1.0/576):#x}")
    e(f"s_mov_b32 s35, s34")
    e.wait(ds=tk[3])
    for i in range(4):
        e(f"v_pk_add_f32 {vr(b+2*i,2)}, {vr(b+2*i,2)}, {vr(b+8+2*i,2)}")
    e.wait(ds=tk[7])
    for i in range(4):
        e(f"v_pk_add_f32 {vr(b+16+2*i,2)}, {vr(b+16+2*i,2)}, {vr(b+24+2*i,2)}")
    for i in range(4):
        e(f"v_pk_add_f32 {vr(b+2*i,2)}, {vr(b+2*i,2)}, {vr(b+16+2*i,2)}")
    e(f"v_pk_mul_f32 {vr(b,2)}, {vr(b,2)}, s[34:35]")
    e(f"v_pk_mul_f32 {vr(b+2,2)}, {vr(b+2,2)}, s[34:35]")
    e(f"v_pk_fma_f32 {vr(b+2,2)}, {vr(b,2)}, {vr(b,2)}, {vr(b+2,2)} neg_lo:[1,0,0] neg_hi:[1,0,0]")
    e(f"v_pk_fma_f32 {vr(b+4,2)}, {vr(b,2)}, {vr(b+6,2)}, {vr(b+4,2)} op_sel_hi:[1,0,1] neg_lo:[1,0,0] neg_hi:[1,0,0]")
    for i in range(2):
        e(f"v_max_f32 v{b+2+i}, 0, v{b+2+i}")
    for i in range(2):
        e(f"v_add_f32 v{b+2+i}, {f32bits(1e-5):#x}, v{b+2+i}")
    for i in range(2):
        e(f"v_rsq_f32 v{b+2+i}, v{b+2+i}")
    e(f"v_add_u32 v{T+11}, 1, v{T+12}")
    e(f"v_pk_mul_f32 {vr(b+4,2)}, {vr(b+4,2)}, {vr(b+2,2)}")
    e(f"v_pk_mul_f32 {vr(b,2)}, {vr(b,2)}, {vr(b+2,2)} neg_lo:[1,0] neg_hi:[1,0]")
    e("s_mov_b32 s34, 0x7ff")
    for i in range(2):
        e(f"v_ashrrev_i32 v{b+8+i}, 31, v{b+4+i}")
    for i in range(2):
        e(f"v_or_b32 v{b+8+i}, 0x80000000, v{b+8+i}")
    for i in range(2):
        e(f"v_xor_b32 v{b+4+i}, v{b+4+i}, v{b+8+i}")
    for i in range(2):
        e(f"v_lshrrev_b32 v{b+4+i}, 1, v{b+4+i}")
    for i in range(2):
        e(f"v_max_u32 v{b+4+i}, 0x800, v{b+4+i}")
    e(f"v_bfi_b32 v{b+4}, s34, v{T+12}, v{b+4}")
    e(f"v_bfi_b32 v{b+5}, s34, v{T+11}, v{b+5}")
    e("s_cmp_lg_u32 s32, 0")
    e("s_cbranch_scc1 L_k2_nopub")
    for q in range(8):
        e(f"v_readlane_b32 s{52+q}, v{b+4+q%2}, {16*(q//2)}")
    e(f"v_cndmask_b32 v{b+8}, v{b+4}, v{b+5}, vcc")
    e(f"v_mov_b32 v{b+9}, 0")
    pairs = (60, 62, 64, 66, 44, 46, 4, 6)
    for q in range(8):
        e(f"v_cmp_gt_u32 s[{pairs[q]}:{pairs[q]+1}], s{52+q}, v{b+8}")
    for q in range(8):
        e(f"v_addc_co_u32 v{b+9}, vcc, 0, v{b+9}, s[{pairs[q]}:{pairs[q]+1}]")
    e(f"v_lshrrev_b32 v{b+10}, 2, v{b+9}")
    e(f"v_and_b32 v{b+9}, 3, v{b+9}")
    e(f"v_lshl_add_u32 v{b+10}, v{b+10}, 12, v{T+13}")
    e(f"v_lshl_add_u32 v{b+10}, v{b+9}, 2, v{b+10}")
    e(f"buffer_store_dword v{b+8}, v{b+10}, {sr(SRD_WS,4)}, 0 offen sc1")
    e.label("L_k2_nopub")
    e.stamp(ST["pub"])
    for j in range(9):
        e(f"v_pk_fma_f32 {N(j)}, {H(j)}, {vr(b+2,2)}, {vr(b,2)}")
    e(f"s_mov_b32 s34, {WS_HN}")
    e(f"v_and_b32 v{T}, 1, v{V_L}")
    e(f"v_mul_u32_u24 v{T+1}, 1150, v{T}")
    e(f"v_add_u32 v{V_XE}, v{V_XE}, v{T+1}")
    e(f"v_mul_u32_u24 v{T+1}, 0xfe0606, v{T}")
    e(f"v_lshlrev_b32 v{T+2}, 25, v{T}")
    e(f"v_sub_u32 v{T+1}, v{T+1}, v{T+2}")
    e(f"v_lshlrev_b32 v{T+2}, 24, v{T}")
    e(f"v_sub_u32 v{T+1}, v{T+1}, v{T+2}")
    e(f"v_add_u32 v{T+1}, 0x05040100, v{T+1}")

    def pack(d, src):
        for tk in range(2):
            for i in range(4):
                e(f"v_cvt_pk_bf16_f32 v{d+4*tk+i}, v{src(2*i,tk)}, v{src(2*i+1,tk)}")
        e(f"v_cvt_pk_bf16_f32 v{d+8}, v{src(8,0)}, v{src(8,1)}")
        e(f"v_min_u32 v{d}, -2, v{d}")
        e(f"v_min_u32 v{d+4}, -2, v{d+4}")
        e(f"v_mov_b32_dpp v{d+9}, v{d+8} quad_perm:[1,0,3,2] row_mask:0xf bank_mask:0xf")
        e(f"v_perm_b32 v{d+8}, v{d+9}, v{d+8}, v{T+1}")
        e(f"v_min_u32 v{d+8}, -2, v{d+8}")
    d = V_S[1]
    pack(d, lambda j, tk: V_ACC + 4 * j + 2 + tk)
    for tk in range(2):
        e.vm(f"buffer_store_dwordx4 {vr(d+4*tk,4)}, v{V_XO}, {sr(SRD_WS,4)}, s34 offen offset:{1152*tk} sc1")
    e.vm(f"buffer_store_dword v{d+8}, v{V_XE}, {sr(SRD_WS,4)}, s34 offen sc1")
    for j in range(9):
        e(f"v_pk_add_f32 {H(j)}, {H(j)}, {N(j)}")
    pack(V_OUT, lambda j, tk: V_ACC + 4 * j + tk)


V_OUT = 52
V_K = 64
V_D = 96
V_XF = 128
A_WF, A_DF = 0, 72


def rank16(e, cnt, x, tmp):
    e(f"v_mov_b32 v{cnt}, 0")
    for k in range(1, 16):
        t = tmp + (k & 1)
        e(f"v_sub_u32_dpp v{t}, v{x}, v{x} row_ror:{k} row_mask:0xf bank_mask:0xf")
        if k > 1:
            e(f"v_alignbit_b32 v{cnt}, v{cnt}, v{tmp + ((k-1) & 1)}, 31")
    e(f"v_alignbit_b32 v{cnt}, v{cnt}, v{tmp+1}, 31")
    e(f"v_bcnt_u32_b32 v{cnt}, v{cnt}, 0")


def spin_guard(e, label):
    e("s_add_u32 s47, s47, 1")
    e(f"s_cmp_lt_u32 s47, {SPIN}")
    e(f"s_cbranch_scc1 {label}")


def moe_tail(e, tok):
    T = V_T
    D = V_D
    K = V_K
    TOKA = T + 12
    V_C, V_G, V_LW = T + 2, T + 3, T + 4
    V_LC, V_LG = T + 5, T + 6
    e(f"v_and_b32 v{V_C}, 15, v{V_L}")
    e(f"v_lshrrev_b32 v{V_G}, 4, v{V_L}")
    e("s_lshl_b32 s35, s32, 8")
    e(f"s_add_u32 s35, s35, {L_LIST}")
    e(f"v_lshl_add_u32 v{V_LW}, v{V_C}, 2, s35")
    e.ds(f"ds_write_b32 v{V_LW}, v{V_Z}")
    e(f"v_lshrrev_b32 v{D}, 3, v{V_L}")
    e("s_and_b32 s36, s32, 1")
    e("s_lshl_b32 s37, s36, 5")
    e("s_add_u32 s37, s37, s35")
    e(f"v_lshl_add_u32 v{T+7}, v{D}, 2, s37")
    e(f"v_and_b32 v{D}, 7, v{V_L}")
    e("s_lshl_b32 s37, s36, 2")
    e(f"v_add_u32 v{D+1}, s37, v{V_G}")
    e(f"v_xor_b32 v{D}, v{D}, v{D+1}")
    e(f"v_lshlrev_b32 v{T+8}, 4, v{D}")
    e("s_and_b32 s38, s2, 7")
    e("s_lshl_b32 s38, s38, 13")
    e(f"s_add_u32 s38, s38, {WS_R}")
    e(f"s_waitcnt vmcnt({min(e.vm_n - tok['ffn'], 63)})")
    e("s_barrier")
    e("s_cmp_ge_u32 s2, 144")
    e("s_cbranch_scc1 L_k2_nofrag")
    e(f"v_lshrrev_b32 v{D}, 2, v{V_C}")
    e(f"v_and_b32 v{D+1}, 1, v{V_G}")
    e(f"v_lshrrev_b32 v{D+2}, 1, v{V_G}")
    e(f"v_lshl_add_u32 v{D+3}, v{D+1}, 3, v{D}")
    e(f"v_lshlrev_b32 v{D+3}, 6, v{D+3}")
    e(f"v_lshl_add_u32 v{D+3}, v{D+2}, 11, v{D+3}")
    e(f"v_bfe_u32 v{D+4}, v{V_C}, 1, 1")
    e(f"v_lshl_add_u32 v{D+3}, v{D+4}, 10, v{D+3}")
    e(f"v_and_b32 v{D+4}, 1, v{V_C}")
    e(f"v_lshl_add_u32 v{D+3}, v{D+4}, 3, v{D+3}")
    e(f"v_lshlrev_b32 v{D+4}, 1, v{D+1}")
    e(f"v_xor_b32 v{D+4}, s32, v{D+4}")
    e(f"v_lshl_add_u32 v{D+3}, v{D+4}, 4, v{D+3}")
    e(f"v_add_u32 v{D+3}, {L_W}, v{D+3}")
    e(f"v_add_u32 v{D+4}, {9*4096}, v{D+3}")
    e(f"v_lshrrev_b32 v{D+5}, 1, v{D}")
    e(f"v_lshlrev_b32 v{D+5}, 3, v{D+5}")
    e(f"v_lshl_add_u32 v{D+5}, v{D+1}, 2, v{D+5}")
    e(f"v_lshl_add_u32 v{D+5}, v{D+2}, 1, v{D+5}")
    e(f"v_and_b32 v{D+6}, 1, v{D}")
    e(f"v_add_u32 v{D+5}, v{D+5}, v{D+6}")
    e(f"v_mul_u32_u24 v{D+5}, 1152, v{D+5}")
    e(f"v_and_b32 v{D+6}, 3, v{V_C}")
    e(f"v_lshl_add_u32 v{D+5}, v{D+6}, 3, v{D+5}")
    e("s_mul_i32 s37, s32, 288")
    e(f"s_add_u32 s37, s37, {L_D}")
    e(f"v_add_u32 v{D+5}, s37, v{D+5}")
    n = 0
    for s in range(18):
        for hh in range(2):
            e(f"ds_read_b64_tr_b16 {ar(A_WF+4*s+2*hh,2)}, v{D+3+s//9} offset:{4096*(s%9)+256*hh}")
            n += 1
            if n % 8 == 0:
                e("s_waitcnt lgkmcnt(6)")
    for j in range(9):
        for hh in range(2):
            e(f"ds_read_b64_tr_b16 {ar(A_DF+4*j+2*hh,2)}, v{D+5} offset:{18432*hh+32*j}")
            n += 1
            if n % 8 == 0:
                e("s_waitcnt lgkmcnt(6)")
    e.label("L_k2_nofrag")
    e.stamp(ST["poll0"])
    e("s_mov_b32 s47, 0")
    e.label("L_k2_poll")
    for i in range(4):
        e(f"buffer_load_dwordx4 {vr(K+4*i,4)}, v{V_L16}, {sr(SRD_WS,4)}, s38 offen offset:{1024*i} sc1")
    e.wait_all()
    for pl in range(3):
        e(f"v_max3_u32 v{D+pl}, v{K+pl}, v{K+4+pl}, v{K+8+pl}")
    for pl in range(3):
        e(f"v_max_u32 v{D+pl}, v{D+pl}, v{K+12+pl}")
    e(f"v_mov_b32 v{D+4}, v{D}")
    e(f"v_max3_u32 v{D+3}, v{D}, v{D+1}, v{D+2}")
    e(f"v_cmp_gt_i32 vcc, 0, v{D+3}")
    e(f"v_permlane16_swap_b32 v{D+4}, v{D}")
    e("s_cbranch_vccz L_k2_polled")
    spin_guard(e, "L_k2_poll")
    e.label("L_k2_polled")
    e.stamp(ST["polled"])
    e(f"v_max_u32 v{D}, v{D}, v{D+4}")
    e(f"v_mov_b32 v{D+4}, v{D}")
    e.nop(2)
    e(f"v_permlane32_swap_b32 v{D+4}, v{D}")
    e.nop(1)
    e(f"v_max_u32 v{D}, v{D}, v{D+4}")
    e.nop(1)
    rank16(e, D + 5, D, D + 6)
    e(f"v_cmp_eq_u32 vcc, 8, v{D+5}")
    e("s_ff1_i32_b64 s52, vcc")
    e("s_and_b32 s52, s52, 63")
    e(f"v_readlane_b32 s52, v{D}, s52")
    e.nop(2)
    for i in range(4):
        e(f"v_cmp_le_u32 s[{60+2*i}:{61+2*i}], s52, v{K+4*i}")
    e(f"v_cmp_le_u32 s[44:45], s52, v{D+2}")
    e(f"v_cmp_le_u32 vcc, s52, v{D+1}")

    def counts(first):
        for i in range(4):
            e(f"s_bcnt1_i32_b64 s{54+i}, s[{60+2*i}:{61+2*i}]")
        if first:
            e("s_mov_b32 s53, 0")
        else:
            e("s_mov_b32 s53, s57_old".replace("s57_old", "s58"))
            e("s_add_u32 s54, s54, s53")
        e("s_add_u32 s55, s55, s54")
        e("s_add_u32 s56, s56, s55")
        e("s_add_u32 s58, s57, s56")
        e("s_cmp_gt_u32 s58, 16")
        e("s_cbranch_scc1 L_k2_selslow")

    def compact(pl):
        for i in range(4):
            e(f"v_mbcnt_lo_u32_b32 v{D+8+i}, s{60+2*i}, 0")
        for i in range(4):
            e(f"v_mbcnt_hi_u32_b32 v{D+8+i}, s{61+2*i}, v{D+8+i}")
        for i in range(4):
            e(f"s_lshl_b32 s{53+i}, s{53+i}, 2")
            e(f"s_add_u32 s{53+i}, s{53+i}, s35")
        for i in range(4):
            e(f"v_lshl_add_u32 v{D+8+i}, v{D+8+i}, 2, s{53+i}")
        for i in range(4):
            e(f"s_mov_b64 exec, s[{60+2*i}:{61+2*i}]")
            e(f"ds_write_b32 v{D+8+i}, v{K+4*i+pl}")
        e("s_mov_b64 exec, -1")
    e("s_cmp_lg_u64 s[44:45], 0")
    e("s_cbranch_scc1 L_k2_selslow")
    counts(True)
    compact(0)
    e("s_cbranch_vccz L_k2_listed")
    for i in range(4):
        e(f"v_cmp_le_u32 s[{60+2*i}:{61+2*i}], s52, v{K+4*i+1}")
    counts(False)
    compact(1)
    e.label("L_k2_listed")
    e(f"ds_read_b32 v{V_LG}, v{T+7}")
    e(f"ds_read_b32 v{V_LC}, v{V_LW}")
    e("s_lshr_b32 s37, s32, 1")
    e("s_lshl_b32 s52, s37, 7")
    e(f"s_add_u32 s52, s52, {WS_HN}")
    e("s_lshl_b32 s53, s37, 11")
    e("s_lshl_b32 s54, s36, 10")
    e("s_add_u32 s53, s53, s54")
    e(f"s_add_u32 s53, s53, {L_XS}")
    e("s_cmp_ge_u32 s2, 144")
    e("s_waitcnt lgkmcnt(1)")
    e("s_cbranch_scc1 L_k2_nogather")
    e(f"v_and_b32 v{D}, 0x7ff, v{V_LG}")
    e(f"v_cmp_eq_u32 vcc, 0, v{V_LG}")
    e(f"v_mad_u32_u24 v{T+9}, v{D}, s43, v{T+8}".replace("s43", "s41"))
    e(f"v_mov_b32 v{D+1}, {OOB}")
    e(f"v_cndmask_b32 v{T+9}, v{T+9}, v{D+1}, vcc")

    def gather():
        for i in range(5):
            e(f"s_add_u32 m0, s53, {4096*i}")
            if i < 4:
                e(f"s_add_u32 s54, s52, {256*i}")
            else:
                e(f"s_mov_b32 s54, {WS_HN + 1024}")
            e(f"buffer_load_dwordx4 v{T+9}, {sr(SRD_WS,4)}, s54 offen sc1 lds")
    gather()
    e.label("L_k2_nogather")
    e.stamp(ST["gath"])
    e("s_waitcnt lgkmcnt(0)")
    rank16(e, D + 5, V_LC, D + 6)
    e(f"v_cmp_le_u32 s[60:61], 8, v{D+5}")
    e(f"v_lshlrev_b32 v{D}, v{V_C}, 1".replace(f"v{V_C}, 1", f"v{V_C}, v{T+10}"))
    e(f"v_subrev_u32 v{D}, 1, v{D}")
    e(f"v_and_b32 v{D}, s60, v{D}")
    e(f"v_bcnt_u32_b32 v{D+8}, v{D}, 0")
    e(f"v_and_b32 v{D+1}, 0x7ff, v{V_LC}")
    e(f"v_add_u32 v{D+2}, 1, v{D+8}")
    e(f"v_cndmask_b32 v{D+2}, 0, v{D+2}, s[60:61]")
    e(f"v_sub_u32 v{D+1}, v{D+1}, v{TOKA}")
    e(f"v_cmp_eq_u32 s[62:63], 0, v{D+1}")
    e(f"v_cmp_eq_u32 s[64:65], 1, v{D+1}")
    e(f"v_mov_b32 v{D+9}, {OOB}")
    e(f"v_cndmask_b32 v{D+3}, 0, v{D+2}, s[62:63]")
    e(f"v_cndmask_b32 v{D+4}, 0, v{D+2}, s[64:65]")
    e(f"v_lshl_or_b32 v{D+3}, v{D+4}, 8, v{D+3}")
    for sh in (8, 4, 2, 1):
        e.nop(2)
        e(f"v_or_b32_dpp v{D+3}, v{D+3}, v{D+3} row_ror:{sh} row_mask:0xf bank_mask:0xf")
    e(f"v_lshrrev_b32 v{D+4}, 8, v{D+3}")
    e(f"v_cmp_ne_u32 vcc, 0, v{D+3}")
    e(f"v_and_b32 v{D+3}, 0xff, v{D+3}")
    e(f"v_cmp_eq_u32 s[44:45], 1, v{T}")
    e(f"v_cmp_eq_u32 s[62:63], 0, v{D+3}")
    e(f"v_cmp_eq_u32 s[64:65], 0, v{D+4}")
    e(f"v_cndmask_b32 v{D+5}, v{D+3}, v{D+4}, s[44:45]")
    e(f"v_cmp_eq_u32 s[66:67], 0, v{D+5}")
    e("s_mov_b32 s59, 0")
    e("s_cbranch_vccz L_k2_nobase")
    e("s_lshl_b32 s54, s32, 4")
    e(f"v_add_u32 v{D+6}, s54, v{V_C}")
    e(f"v_mul_u32_u24 v{D+6}, {PSTR}, v{D+6}")
    e(f"v_lshl_add_u32 v{D+10}, v{D+3}, 4, v{D+6}")
    e(f"v_lshl_add_u32 v{D+11}, v{D+4}, 4, v{D+6}")
    e("s_lshl_b32 s54, s32, 1")
    e("s_add_u32 s54, s54, 64")
    e(f"v_lshrrev_b32 v{D+6}, 3, v{V_C}")
    e(f"v_add_u32 v{D+6}, s54, v{D+6}")
    e(f"v_mul_u32_u24 v{D+6}, {PSTR}, v{D+6}")
    e(f"v_and_b32 v{D+7}, 6, v{V_C}")
    e(f"v_lshl_add_u32 v{D+6}, v{D+7}, 1, v{D+6}")
    e(f"v_lshl_add_u32 v{D+12}, v{D+5}, 4, v{D+6}")
    for i in range(3):
        e(f"v_cndmask_b32 v{D+10+i}, v{D+10+i}, v{D+9}, s[{62+2*i}:{63+2*i}]")
    e(f"s_mov_b32 s54, {WS_PART + 144*128 - 16}")
    e(f"buffer_store_dwordx4 {vr(V_OUT,4)}, v{D+10}, {sr(SRD_WS,4)}, s54 offen sc1")
    e(f"buffer_store_dwordx4 {vr(V_OUT+4,4)}, v{D+11}, {sr(SRD_WS,4)}, s54 offen sc1")
    e(f"buffer_store_dword v{V_OUT+8}, v{D+12}, {sr(SRD_WS,4)}, s54 offen sc1")
    e("s_mov_b32 s59, 1")
    e.label("L_k2_nobase")
    e(f"v_cndmask_b32 v{D+10}, v{D+9}, v{V_XO}, s[62:63]")
    e(f"v_cndmask_b32 v{D+11}, v{D+9}, v{V_XO}, s[64:65]")
    e(f"v_cndmask_b32 v{D+12}, v{D+9}, v{V_XE}, s[66:67]")
    e(f"buffer_store_dwordx4 {vr(V_OUT,4)}, v{D+10}, {sr(SRD_OUT,4)}, 0 offen")
    e(f"buffer_store_dwordx4 {vr(V_OUT+4,4)}, v{D+11}, {sr(SRD_OUT,4)}, 0 offen offset:1152")
    e(f"buffer_store_dword v{V_OUT+8}, v{D+12}, {sr(SRD_OUT,4)}, 0 offen")
    e("s_cmp_ge_u32 s2, 144")
    e("s_cbranch_scc1 L_k2_reduce")

    e(f"v_lshrrev_b32 v{D}, 11, v{V_LC}")
    e(f"v_lshl_or_b32 v{D}, v{D}, 1, 1")
    e(f"v_lshlrev_b32 v{D}, 11, v{D}")
    e(f"v_ashrrev_i32 v{D+1}, 31, v{D}")
    e(f"v_not_b32 v{D+1}, v{D+1}")
    e(f"v_or_b32 v{D+1}, 0x80000000, v{D+1}")
    e(f"v_xor_b32 v{D}, v{D}, v{D+1}")
    e(f"v_mul_f32 v{D}, {f32bits(-math.log2(math.e)):#x}, v{D}")
    e(f"v_exp_f32 v{D}, v{D}")
    e(f"v_lshrrev_b32 v{D+1}, 1, v{V_C}")
    e(f"v_add_f32 v{D}, 1.0, v{D}")
    e(f"v_rcp_f32 v{D+13}, v{D}")
    e(f"v_xor_b32 v{D+1}, v{D+1}, v{V_G}")
    e(f"v_lshlrev_b32 v{D+1}, 4, v{D+1}")
    e(f"v_lshl_add_u32 v{D+1}, v{V_C}, 7, v{D+1}")
    e(f"v_add_u32 v{D+14}, {L_XS}, v{D+1}")
    e(f"v_xor_b32 v{D+15}, 64, v{D+14}")
    e(f"v_and_b32 v{D+1}, 1, v{V_G}")
    e(f"v_lshrrev_b32 v{D+2}, 1, v{V_G}")
    e(f"v_lshl_add_u32 v{D+2}, v{D+1}, 1, v{D+2}")
    e(f"v_mul_u32_u24 v{D+2}, {PSTR}, v{D+2}")
    e(f"v_lshl_add_u32 v{D+2}, v{D+8}, 4, v{D+2}")
    e(f"v_cndmask_b32 v{D+16}, v{D+9}, v{D+2}, s[60:61]")
    e(f"v_cmp_eq_u32 vcc, 0, v{D+1}")
    e(f"s_mul_i32 s55, s32, {18*PSTR}")
    e("s_lshl_b32 s56, s3, 7")
    e(f"v_cndmask_b32 v{D+17}, v{D+9}, v{D+16}, vcc")
    e("s_add_u32 s55, s55, s56")
    e(f"s_add_u32 s55, s55, {WS_PART}")
    e("s_mov_b32 s47, 0")
    e("s_cmp_eq_u32 s59, 1")
    e("s_waitcnt vmcnt(6)")
    e("s_cbranch_scc1 L_k2_ffn")
    e("s_waitcnt vmcnt(3)")
    e.label("L_k2_ffn")
    e("s_barrier")
    e.stamp(ST["rows"])
    G = D + 20
    e.ds_done = e.ds_n
    rt = []

    def xread(s):
        rt.append(e.ds(f"ds_read_b128 {vr(V_XF+4*s,4)}, v{D+14+(s&1)} offset:{2048*(s//2)}"))
    for s in range(6):
        xread(s)
    e(f"v_mov_b32 v{D+18}, 0")
    for s in range(18):
        e.wait(ds=rt[s])
        e(f"v_mfma_f32_16x16x32_bf16 {vr(G,4)}, {ar(A_WF+4*s,4)}, {vr(V_XF+4*s,4)}, {'0' if s == 0 else vr(G,4)}")
        if s + 6 < 18:
            xread(s + 6)
        x = V_XF + 4 * s
        if s >= 16:
            e(f"v_max3_u32 v{D+18}, v{D+18}, v{x}, v{x+1}")
            e(f"v_max3_u32 v{D+18}, v{D+18}, v{x+2}, v{x+3}")
        elif s % 2 == 1:
            e(f"v_max3_u32 v{D+18}, v{D+18}, v{x-4}, v{x}")
    e(f"v_cmp_eq_u32 vcc, -1, v{D+18}")
    e.nop(4)
    e("s_cbranch_vccnz L_k2_regather")
    e.label("L_k2_ffn2")
    e(f"v_permlane32_swap_b32 v{G}, v{G+2}")
    e(f"v_permlane32_swap_b32 v{G+1}, v{G+3}")
    e.nop(1)
    for i in range(2):
        e(f"v_mul_f32 v{G+4+i}, {f32bits(-math.log2(math.e)):#x}, v{G+i}")
    for i in range(2):
        e(f"v_exp_f32 v{G+4+i}, v{G+4+i}")
    for i in range(2):
        e(f"v_mul_f32 v{G+i}, v{G+i}, v{G+2+i}")
    for i in range(2):
        e(f"v_add_f32 v{G+4+i}, 1.0, v{G+4+i}")
    for i in range(2):
        e(f"v_rcp_f32 v{G+4+i}, v{G+4+i}")
    for i in range(2):
        e(f"v_mul_f32 v{G+i}, v{G+i}, v{D+13}")
    for i in range(2):
        e(f"v_mul_f32 v{G+i}, v{G+i}, v{G+4+i}")
    e(f"v_cvt_pk_bf16_f32 v{G}, v{G}, v{G+1}")
    e(f"ds_write_b32 v{V_AW}, v{G}")
    e("s_waitcnt lgkmcnt(0)")
    e("s_barrier")
    e(f"ds_read_b128 {vr(V_A,4)}, v{V_L16} offset:{L_A}")
    e("s_waitcnt lgkmcnt(0)")
    Y = V_XF
    for j in range(9):
        e(f"v_mfma_f32_16x16x32_bf16 {vr(Y+4*j,4)}, {ar(A_DF+4*j,4)}, {vr(V_A,4)}, 0")
    e.stamp(ST["ffn"])
    P = K
    for pr in range(5):
        a, b2 = Y + 8 * pr, (Y + 8 * pr + 4 if pr < 4 else Y + 8 * pr)
        p = P + 4 * pr
        if pr == 0:
            e.nop(1)
        e(f"v_cvt_pk_bf16_f32 v{p}, v{a}, v{a+1}")
        e(f"v_cvt_pk_bf16_f32 v{p+2}, v{b2}, v{b2+1}")
        e(f"v_cvt_pk_bf16_f32 v{p+1}, v{a+2}, v{a+3}")
        e(f"v_cvt_pk_bf16_f32 v{p+3}, v{b2+2}, v{b2+3}")
        e(f"v_permlane16_swap_b32 v{p}, v{p+2}")
        e.nop(1)
        e(f"v_permlane16_swap_b32 v{p+1}, v{p+3}")
        e(f"v_min_u32 v{p}, -2, v{p}")
        e(f"buffer_store_dwordx4 {vr(p,4)}, v{D+16+(pr==4)}, {sr(SRD_WS,4)}, s55 offen sc1")
        if pr < 4:
            e(f"s_add_u32 s55, s55, {4*PSTR}")
    e.stamp_flush(1, SRD_WS, 32, ST["end"] + 1, WS_STAMP)
    e("s_endpgm")
    e.label("L_k2_regather")
    e("s_add_u32 s47, s47, 1")
    e(f"s_cmp_ge_u32 s47, {SPIN}")
    e("s_cbranch_scc1 L_k2_ffn2")
    e("s_barrier")
    gather()
    e("s_waitcnt vmcnt(0)")
    e("s_branch L_k2_ffn")

    e.label("L_k2_reduce")
    e("s_cmp_ge_u32 s2, 216")
    e("s_cselect_b32 s54, 1, s32")
    e("s_cmp_lg_u32 s54, 0")
    e("s_cbranch_scc1 L_k2_done")
    e(f"v_lshl_add_u32 v{D}, v{D+8}, 2, s35")
    e("s_mov_b64 exec, s[60:61]")
    e(f"ds_write_b32 v{D}, v{V_LC} offset:64")
    e("s_mov_b64 exec, -1")
    e(f"v_and_b32 v{D}, 7, v{V_L}")
    e(f"v_lshl_add_u32 v{D}, v{D}, 2, s35")
    e(f"ds_read_b32 v{D+1}, v{D} offset:64")
    for q in range(4):
        e(f"v_cmp_eq_u32 s[62:63], {2*q}, v{V_C}")
        e(f"v_cmp_eq_u32 s[64:65], {2*q+1}, v{V_C}")
        e(f"v_mov_b32 v{D+2}, 0x3f80")
        e(f"v_cndmask_b32 v{V_A+q}, 0, v{D+2}, s[62:63]")
        e(f"v_cndmask_b32 v{V_A+q}, v{V_A+q}, 1.0, s[64:65]")
    e(f"v_cmp_gt_u32 vcc, 8, v{V_L}")
    e("s_sub_u32 s54, s2, 144")
    e(f"s_mul_i32 s55, s54, {PSTR}")
    e(f"v_cndmask_b32 v{D+3}, v{D+9}, v{V_L16}, vcc")
    e(f"s_add_u32 s55, s55, {WS_PART}")
    for i in range(1, 5):
        e(f"s_add_u32 s{55+i}, s55, {4096*i}")
    e("s_lshl_b32 s54, s54, 4")
    e(f"v_and_b32 v{D+4}, 40, v{V_L}")
    e(f"v_cmp_eq_u32 vcc, 0, v{D+4}")
    e("s_waitcnt lgkmcnt(0)")
    e(f"v_and_b32 v{D+1}, 0x7ff, v{D+1}")
    e(f"v_mul_u32_u24 v{D+1}, 1152, v{D+1}")
    e(f"v_lshl_add_u32 v{D+1}, v{V_G}, 3, v{D+1}")
    e(f"v_cndmask_b32 v{D+1}, v{D+9}, v{D+1}, vcc")
    e("s_mov_b32 s47, 0")
    e.stamp(ST["rows"])
    e.label("L_k2_rpoll")
    R = V_XF - 8
    for i in range(19):
        e(f"buffer_load_dwordx4 {vr(R+4*i,4)}, v{(V_L16 if i < 18 else D+3)}, {sr(SRD_WS,4)}, s{55+i//4} offen offset:{1024*(i%4)} sc1")
    e(f"v_mov_b32 v{D+5}, 0")
    S = D + 10
    for i in range(19):
        e(f"s_waitcnt vmcnt({18-i})")
        e(f"v_mfma_f32_16x16x32_bf16 {vr(S,4)}, {vr(V_A,4)}, {vr(R+4*i,4)}, {'0' if i == 0 else vr(S,4)}")
        x = R + 4 * i
        if i == 18:
            e(f"v_max3_u32 v{D+5}, v{D+5}, v{x}, v{x+1}")
            e(f"v_max3_u32 v{D+5}, v{D+5}, v{x+2}, v{x+3}")
        elif i % 2 == 1:
            e(f"v_max3_u32 v{D+5}, v{D+5}, v{x-4}, v{x}")
    e(f"v_cmp_eq_u32 vcc, -1, v{D+5}")
    e.nop(4)
    e("s_cbranch_vccz L_k2_rdone")
    spin_guard(e, "L_k2_rpoll")
    e.label("L_k2_rdone")
    e.stamp(ST["ffn"])
    e.nop(1)
    for i in range(4):
        e(f"v_add_f32_dpp v{S+i}, v{S+i}, v{S+i} row_ror:8 row_mask:0xf bank_mask:0xf")
    e(f"v_cvt_pk_bf16_f32 v{S}, v{S}, v{S+1}")
    e(f"v_cvt_pk_bf16_f32 v{S+1}, v{S+2}, v{S+3}")
    e(f"buffer_store_dwordx2 {vr(S,2)}, v{D+1}, {sr(SRD_OUT,4)}, s54 offen")
    e.stamp_flush(1, SRD_WS, 32, ST["end"] + 1, WS_STAMP)
    e.label("L_k2_done")
    e("s_endpgm")

    e.label("L_k2_selslow")
    e("s_mov_b32 s47, 0")
    e("s_add_u32 s54, s38, 4096")
    e.label("L_k2_poll2")
    for i in range(8):
        e(f"buffer_load_dwordx4 {vr(K+4*i,4)}, v{V_L16}, {sr(SRD_WS,4)}, s{38 if i < 4 else 54} offen offset:{1024*(i%4)} sc1")
    e("s_waitcnt vmcnt(0) lgkmcnt(0)")
    e(f"v_max_u32 v{D}, v{K}, v{K+1}")
    for i in range(2, 32, 2):
        e(f"v_max3_u32 v{D}, v{D}, v{K+i}, v{K+i+1}")
    e(f"v_cmp_gt_i32 vcc, 0, v{D}")
    e.nop(4)
    e("s_cbranch_vccz L_k2_polled2")
    spin_guard(e, "L_k2_poll2")
    e.label("L_k2_polled2")
    e("s_mov_b32 s52, -1")
    e("s_mov_b32 s53, 0")
    e(f"v_mov_b32 v{V_LC}, 0")
    e.label("L_k2_selround")
    for i in range(32):
        e(f"v_sub_u32 v{D+i}, s52, v{K+i}")
    e(f"v_min_u32 v{D}, v{D}, v{D+1}")
    for i in range(2, 32, 2):
        e(f"v_min3_u32 v{D}, v{D}, v{D+i}, v{D+i+1}")
    for sh in (8, 4, 2, 1):
        e.nop(2)
        e(f"v_min_u32_dpp v{D}, v{D}, v{D} row_ror:{sh} row_mask:0xf bank_mask:0xf")
    e.nop(1)
    for q in range(4):
        e(f"v_readlane_b32 s{54+q}, v{D}, {16*q}")
    e(f"v_cmp_eq_u32 vcc, s53, v{V_C}")
    e("s_min_u32 s54, s54, s55")
    e("s_min_u32 s56, s56, s57")
    e("s_min_u32 s54, s54, s56")
    e("s_sub_u32 s54, s52, s54")
    e(f"v_mov_b32 v{D}, s54")
    e(f"v_cndmask_b32 v{V_LC}, v{V_LC}, v{D}, vcc")
    e("s_sub_u32 s52, s54, 1")
    e("s_add_u32 s53, s53, 1")
    e("s_cmp_lt_u32 s53, 8")
    e("s_cbranch_scc1 L_k2_selround")
    e(f"ds_write_b32 v{V_LW}, v{V_LC}")
    e("s_branch L_k2_listed")


def slow_path(e):
    T = V_T
    e.label("L_k2_slow")
    e.wait_all()
    e("s_barrier")
    tok = {}
    kv_addr(e)
    load_xw(e, tok)
    for _, _, f in kv_ops(e, tok)[0]:
        f()
    zero_acc(e)
    e.wait_all()
    for op in init_acc_ops():
        e(op)
    e(f"v_lshlrev_b32 v{V_Y+9}, 2, v{V_L}")
    e(f"s_lshl_b32 s34, s32, 8")
    e(f"v_add_u32 v{V_Y+10}, s34, v{V_Y+9}")
    e("s_mov_b32 s43, 0")
    e("s_mov_b32 s45, 0")
    e.label("L_k2_slow_round")
    for op in load_q(e, 0):
        op()
    for a in V_Q1A + (V_Q2O,):
        e(f"v_add_u32 v{a}, 1152, v{a}")
    for j in range(9):
        if j % 2 == 0:
            e(f"s_add_u32 s39, s45, {(j//2)*4096}")
        wo_load(e, tok, 0, j, 0)
        wo_load(e, tok, 0, j, 1)
    e(f"v_mfma_f32_32x32x8_bf16 {ar(A_O[0],16)}, {vr(V_Z,2)}, {vr(V_Z,2)}, 0")
    m = V_Y + 8
    e(f"v_mov_b32 v{m}, 0xff800000")
    e.wait_all()
    s = V_S[0]
    for t in range(16):
        e(qk1(t, 0, 0))
        e(qk2(t, 0, 0))
        e.nop(12)
        for i in range(8):
            e(f"v_max3_f32 v{m}, v{m}, v{s+2*i}, v{s+2*i+1}")
    e(f"v_mov_b32 v{T}, v{m}")
    e.nop(2)
    e(f"v_permlane32_swap_b32 v{T}, v{m}")
    e.nop(2)
    e(f"v_max_f32 v{m}, v{m}, v{T}")
    e.ds(f"ds_write_b32 v{V_Y+10}, v{m} offset:{L_MX}")
    e.wait_all()
    e("s_barrier")
    for w in range(4):
        e.ds(f"ds_read_b32 v{T+w}, v{V_Y+9} offset:{L_MX+256*w}")
    e.wait_all()
    e(f"v_max3_f32 v{m}, v{T}, v{T+1}, v{T+2}")
    e(f"v_max_f32 v{m}, v{m}, v{T+3}")
    for t in range(16):
        e(qk1(t, 0, 0))
        e(qk2(t, 0, 0))
        e.nop(12)
        for i in range(16):
            e(f"v_sub_f32 v{s+i}, v{s+i}, v{m}")
        for i in range(16):
            e(f"v_exp_f32 v{s+i}, v{s+i}")
        e.nop(2)
        e(pv(t, 0, 0, 0))
        e(pv(t, 0, 0, 1))
    e.nop(12)
    for op in write_partials(e, 0):
        op()
    e.wait_all()
    e("s_barrier")
    for i in range(7):
        e(f"v_mov_b32 v{V_Y+i}, v{V_Y+i+1}")
    reduce_full(e, V_Y + 7)
    e.nop(2)
    for j in range(9):
        e(smf16(j, V_A, wo_reg(0, j)[0]))
    e.nop(8)
    e("s_add_u32 s43, s43, 1")
    e("s_add_u32 s45, s45, 73728")
    e("s_cmp_lt_u32 s43, 8")
    e("s_cbranch_scc1 L_k2_slow_round")
    for j in range(9):
        if j % 2 == 0:
            e(f"s_add_u32 s39, s45, {(j//2)*4096}")
        wo_load(e, tok, 0, j, 0)
        wo_load(e, tok, 0, j, 1)
    for i in range(4):
        e(f"v_cvt_pk_bf16_f32 v{V_A8+i}, v{V_Y+2*i}, v{V_Y+2*i+1}")
    e.wait_all()
    e.nop(2)
    for j in range(9):
        e(smf16(j, V_A8, wo_reg(0, j)[0]))
    e("s_branch L_k2_ln2")


def gen():
    names = ("a_iss a_bar a_mm a_st a_flag a_set a_kv a_q loop end" if "front" in OPT else "loop fin ln2 pub poll0 polled gath rows ffn end").split()
    ST.update({n: i + 1 for i, n in enumerate(names)})
    e = Emit()
    tok = {}
    prologue(e, tok)
    mainloop(e, tok)
    if "loop_only" in OPT:
        e.stamp(ST["fin"])
        e.cycstamp(1)
        e.stamp_flush(1, SRD_WS, 32, ST["fin"] + 2, WS_STAMP)
        e("s_endpgm")
        import re
        i0 = next(i for i, l in enumerate(e.lines) if "step 0:" in l)
        pats = []
        if "x_wold" in OPT: pats.append(r"buffer_load.* s(39|40) offen")
        if "x_smf" in OPT: pats.append(r"v_smfmac_f32_16x16")
        if "x_bar" in OPT: pats.append(r"s_barrier")
        if "x_ds" in OPT: pats.append(r"ds_(read|write)")
        if "x_valu" in OPT: pats.append(r"v_(pk_|rcp|subrev|mul_f32|max_u32|cvt)")
        if "x_kv" in OPT: pats.append(r"buffer_load_dwordx4 a.* s(5[2-9]|6[0-7]) offen")
        if "x_ffn" in OPT: pats.append(r"lds$|buffer_store_dwordx4")
        if "x_wait" in OPT: pats.append(r"s_waitcnt (vmcnt\([1-9]|lgkm)")
        if "x_zero" in OPT: pats.append(r"32x32x8_bf16 a")
        if pats:
            i1 = next(i for i, l in enumerate(e.lines) if "s_memtime s[100" in l)
            e.lines[i0:i1] = [l for l in e.lines[i0:i1] if not any(re.search(p, l) for p in pats)]
    final_proj(e, tok)
    ln2_tail(e)
    moe_tail(e, tok)
    slow_path(e)
    e.label("L_k2_end")
    e("s_endpgm")
    return kernel_head(NAME) + e.text(), descriptor(NAME, 512, 256)
```

```python
from asmlib import *
from layout import *

SLOT = 20480
L_EX = 5 * SLOT
L_KX, L_KW, L_WO = 0, 36864, 98304

V_L, V_C, V_G = 0, 2, 3
V_T = 4
V_ONES = 16
V_SUM = 20
V_GRAM = 24
V_CS = 28
V_ACC = 40
V_F = 64
V_AD = 104
V_LD = 124
V_GO = 130
V_FLAG = 131
V_WO = 132
V_E = 148
V_PF = 164
SRD_WS, SRD_X, SRD_DBG, SRD_W, SRD_WO = 16, 20, 24, 28, 68
NTX = " nt"


def mfma(d, a, b, first):
    return f"v_mfma_f32_16x16x32_bf16 {vr(d,4)}, {vr(a,4)}, {vr(b,4)}, {'0' if first else vr(d,4)}"


def diag_masks(e):
    t = V_T
    e(f"v_and_b32 v{t}, 3, v{V_C}")
    e(f"v_lshrrev_b32 v{t+1}, 2, v{V_C}")
    e(f"v_cmp_eq_u32 s[44:45], 1, v{t}")
    e(f"v_cmp_eq_u32 s[46:47], 2, v{t}")
    e(f"v_cmp_eq_u32 s[48:49], 3, v{t}")
    e(f"v_cmp_eq_u32 s[72:73], v{V_G}, v{t+1}")
    for i in range(4):
        e(f"v_mov_b32 v{V_ONES+i}, 0x3f803f80")


def col_stats(e, dst, scale):
    t, u = V_T, V_T + 1
    e(f"v_cndmask_b32 v{t}, v{V_GRAM}, v{V_GRAM+1}, s[44:45]")
    e(f"v_cndmask_b32 v{t}, v{t}, v{V_GRAM+2}, s[46:47]")
    e(f"v_cndmask_b32 v{t}, v{t}, v{V_GRAM+3}, s[48:49]")
    e(f"v_cndmask_b32 v{t}, 0, v{t}, s[72:73]")
    e(f"v_mov_b32 v{u}, v{t}")
    e(f"v_mul_f32 v{dst}, {f32bits(1.0/576):#x}, v{V_SUM}")
    e(f"v_fma_f32 v{t+2}, -v{dst}, v{dst}, s43")
    e(f"v_permlane16_swap_b32 v{u}, v{t}")
    e.nop(1)
    e(f"v_add_f32 v{t}, v{t}, v{u}")
    e(f"v_mov_b32 v{u}, v{t}")
    e.nop(2)
    e(f"v_permlane32_swap_b32 v{u}, v{t}")
    e.nop(1)
    e(f"v_add_f32 v{t}, v{t}, v{u}")
    e(f"v_fmac_f32 v{t+2}, {f32bits(1.0/576):#x}, v{t}")
    e(f"v_max_f32 v{t+2}, s43, v{t+2}")
    e(f"v_rsq_f32 v{dst+1}, v{t+2}")
    e.nop(1)
    if scale != 1.0:
        e(f"v_mul_f32 v{dst+1}, {f32bits(scale):#x}, v{dst+1}")


def go_load(e):
    return e.vm(f"buffer_load_dword v{V_GO}, off, {sr(SRD_DBG,4)}, 0 sc1")


def go_check(e, tk, tag):
    e.wait(vm=tk)
    e(f"v_cmp_ne_u32 vcc, 0, v{V_GO}")
    e(f"s_cbranch_vccnz L_go_{tag}")
    e("s_mov_b32 s40, 0")
    e.label(f"L_gospin_{tag}")
    e(f"buffer_load_dword v{V_GO}, off, {sr(SRD_DBG,4)}, 0 sc1")
    e("s_waitcnt vmcnt(0)")
    e(f"v_cmp_ne_u32 vcc, 0, v{V_GO}")
    e(f"s_cbranch_vccnz L_go_{tag}")
    e("s_add_u32 s40, s40, 1")
    e(f"s_cmp_lt_u32 s40, {SPIN}")
    e(f"s_cbranch_scc1 L_gospin_{tag}")
    e.label(f"L_go_{tag}")


def common_srds(e):
    e(f"s_mov_b32 s{SRD_X}, s4")
    e(f"s_mov_b32 s{SRD_X+1}, s5")


def q_role(e, ST):
    t = V_T
    A = V_AD
    e("s_mul_i32 s35, s34, 43")
    e("s_lshr_b32 s35, s35, 8")
    e("s_mul_i32 s36, s35, 6")
    e("s_sub_u32 s36, s34, s36")
    for j in range(2):
        e(f"v_lshrrev_b32 v{t}, 3, v{V_L}")
        e(f"v_mul_u32_u24 v{t}, 1152, v{t}")
        e(f"v_and_b32 v{t+1}, 7, v{V_L}")
        e(f"v_add_u32 v{t+2}, {4*j}, v{V_G}")
        e(f"v_xor_b32 v{t+1}, v{t+1}, v{t+2}")
        e(f"v_lshl_add_u32 v{V_LD+j}, v{t+1}, 4, v{t}")
        if j:
            e(f"v_add_u32 v{V_LD+j}, {8*1152-1024}, v{V_LD+j}")
    for j in range(3):
        for l in range(64):
            i = 64 * j + l
            assert (i * 171) >> 11 == i // 12
        e(f"v_add_u32 v{t}, {64*j}, v{V_L}")
        e(f"v_mul_u32_u24 v{t+1}, 171, v{t}")
        e(f"v_lshrrev_b32 v{t+1}, 11, v{t+1}")
        e(f"v_mul_u32_u24 v{t+2}, 12, v{t+1}")
        e(f"v_sub_u32 v{t+2}, v{t}, v{t+2}")
        e(f"v_lshrrev_b32 v{t+3}, 2, v{t+1}")
        e(f"v_and_b32 v{t+3}, 2, v{t+3}")
        e(f"v_xor_b32 v{t+2}, v{t+2}, v{t+3}")
        e(f"v_mul_u32_u24 v{t+1}, 1152, v{t+1}")
        e(f"v_lshl_add_u32 v{V_LD+2+j}, v{t+2}, 4, v{t+1}")
        if j:
            e(f"v_subrev_u32 v{V_LD+2+j}, {1024*j}, v{V_LD+2+j}")
    e("s_lshl_b32 s39, s33, 2")
    e("s_add_u32 s39, s39, s35")
    e("s_lshl_b32 s37, s39, 2")
    e("s_add_u32 s37, s37, s32")
    e("s_mul_i32 s37, s37, 18432")
    e("s_mul_i32 s38, s36, 192")
    e("s_mul_i32 s40, s32, 18432")
    e("s_add_u32 s38, s38, s40")
    rot = next((o[3:] for o in OPT if o.startswith("rot")), "full")
    if rot == "full":
        e("s_mul_i32 s42, s36, 3")
        e("s_add_u32 s42, s42, 1")
        e("s_lshr_b32 s42, s42, 1")
        e("s_lshl_b32 s40, s35, 1")
        e("s_add_u32 s42, s42, s40")
        e("s_sub_u32 s40, s42, 9")
        e("s_cmp_ge_u32 s42, 9")
        e("s_cselect_b32 s42, s40, s42")
    elif rot == "0":
        e("s_mov_b32 s42, 0")
    else:
        e("s_add_u32 s42, s35, s36")
        e("s_and_b32 s42, s42, 1")
        e(f"s_mul_i32 s42, s42, {int(rot)}")
    e("s_lshl_b32 s12, s32, 11")
    e("s_mul_i32 s13, s32, 3072")
    e("s_add_u32 s13, s13, 8192")

    def offs(u):
        e(f"s_lshl_b32 s{50+2*u}, s42, 7")
        e(f"s_mul_i32 s{51+2*u}, s42, {64*1152}")
        e(f"s_add_u32 s{50+2*u}, s{50+2*u}, s37")
        e(f"s_add_u32 s{51+2*u}, s{51+2*u}, s38")
        if u < 8:
            e("s_add_u32 s42, s42, 1")
            e("s_cmp_eq_u32 s42, 9")
            e("s_cselect_b32 s42, 0, s42")
    offs(0)
    offs(1)
    e("s_mov_b32 m0, s12")
    e("s_waitcnt lgkmcnt(0)")
    common_srds(e)
    e(f"s_mov_b32 s{SRD_W}, s6")
    e(f"s_mov_b32 s{SRD_W+1}, s7")
    e(f"s_mov_b32 s{SRD_W+2}, {WQ_BYTES}")
    wtok = {}

    def issue_ops(u):
        base = (u % 5) * SLOT

        def ld(j):
            def f():
                if j < 2:
                    wtok[u] = e.vm(f"buffer_load_dwordx4 v{V_LD+j}, {sr(SRD_X,4)}, s{50+2*u} offen offset:{1024*j}{NTX} lds")
                else:
                    wtok[u] = e.vm(f"buffer_load_dwordx4 v{V_LD+j}, {sr(SRD_W,4)}, s{51+2*u} offen offset:{1024*(j-2)} lds")
            return f
        return [lambda: e(f"s_add_u32 m0, s12, {base}"), ld(0), ld(1), lambda: e(f"s_add_u32 m0, s13, {base}"), ld(2), ld(3), ld(4)]

    def issue_now(u):
        for k, f in enumerate(issue_ops(u)):
            f()
            if k in (0, 3):
                e.nop(1)
    issue_now(0)
    issue_now(1)
    e.stamp(ST["a_iss"])
    for u in range(2, 9):
        offs(u)
    e("s_lshr_b32 s37, s32, 1")
    e("s_and_b32 s38, s32, 1")
    e(f"v_lshrrev_b32 v{t}, 1, v{V_C}")
    e(f"v_xor_b32 v{t}, v{t}, v{V_G}")
    e(f"v_lshlrev_b32 v{t}, 4, v{t}")
    e(f"v_lshl_add_u32 v{t}, v{V_C}, 7, v{t}")
    e("s_lshl_b32 s40, s37, 6")
    e(f"v_xor_b32 v{t}, s40, v{t}")
    e("s_lshl_b32 s40, s32, 11")
    e(f"v_add_u32 v{A}, s40, v{t}")
    e(f"v_xor_b32 v{A+1}, 64, v{A}")
    e(f"v_xor_b32 v{A+2}, 0x800, v{A}")
    e(f"v_xor_b32 v{A+3}, 0x800, v{A+1}")
    e(f"v_lshrrev_b32 v{t}, 2, v{V_C}")
    e(f"v_lshl_add_u32 v{t}, v{V_G}, 3, v{t}")
    e(f"v_mul_u32_u24 v{t}, 192, v{t}")
    e(f"v_and_b32 v{t+1}, 3, v{V_C}")
    e(f"v_lshl_add_u32 v{t}, v{t+1}, 3, v{t}")
    e(f"v_and_b32 v{t+1}, 1, v{V_G}")
    e("s_mul_i32 s40, s37, 6144")
    e("s_add_u32 s41, s40, 8192")
    e("s_sub_u32 s42, 14336, s40")
    e("s_mul_i32 s40, s38, 3")
    for tl in range(3):
        e(f"s_add_u32 s43, s40, {tl}")
        e(f"v_xor_b32 v{t+2}, s43, v{t+1}")
        e(f"v_lshl_add_u32 v{t+2}, v{t+2}, 5, v{t}")
        e(f"v_add_u32 v{A+4+tl}, s41, v{t+2}")
        e(f"v_add_u32 v{A+7+tl}, s42, v{t+2}")
    for i in range(10):
        e(f"v_add_u32 v{A+10+i}, {3*SLOT}, v{A+i}")
    e(f"v_lshlrev_b32 v{V_E}, 4, v{V_L}")
    e("s_mul_i32 s40, s32, 3584")
    e(f"s_add_u32 s40, s40, {L_EX}")
    e(f"v_add_u32 v{V_E+1}, s40, v{V_E}")
    e("s_xor_b32 s41, s32, 2")
    e("s_mul_i32 s41, s41, 3584")
    e(f"s_add_u32 s41, s41, {L_EX}")
    e(f"v_add_u32 v{V_E+2}, s41, v{V_E}")
    e(f"v_lshlrev_b32 v{V_E}, 3, v{V_L}")
    e(f"v_add_u32 v{V_E+3}, s40, v{V_E}")
    e("s_xor_b32 s41, s32, 1")
    e("s_mul_i32 s41, s41, 3584")
    e(f"s_add_u32 s41, s41, {L_EX}")
    e(f"v_add_u32 v{V_E+4}, s41, v{V_E}")
    e(f"v_xor_b32 v{t+1}, s38, v{t+1}")
    e(f"v_lshrrev_b32 v{t}, 3, v{V_C}")
    e(f"v_lshl_add_u32 v{t}, v{t+1}, 1, v{t}")
    e(f"v_mul_u32_u24 v{t}, 9216, v{t}")
    e(f"v_lshrrev_b32 v{t+1}, 1, v{V_G}")
    e(f"v_lshl_add_u32 v{t}, v{t+1}, 7, v{t}")
    e(f"v_and_b32 v{t+1}, 7, v{V_C}")
    e(f"v_lshl_add_u32 v{V_E+5}, v{t+1}, 4, v{t}")
    e("s_lshl_b32 s40, s39, 1")
    e("s_add_u32 s40, s40, s37")
    e("s_mul_i32 s40, s40, 36864")
    e("s_lshl_b32 s41, s36, 1")
    e("s_add_u32 s41, s41, s38")
    e("s_mul_i32 s41, s41, 768")
    e("s_add_u32 s14, s40, s41")
    if WS_Q:
        e(f"s_add_u32 s14, s14, {WS_Q}")
    e("s_lshl_b32 s40, s39, 7")
    e("s_lshl_b32 s41, s36, 4")
    e("s_add_u32 s40, s40, s41")
    e(f"s_add_u32 s40, s40, {WS_FLAG + 8192}")
    e(f"v_cmp_eq_u32 vcc, 0, v{V_L}")
    e(f"v_mov_b32 v{t}, {OOB}")
    e(f"v_mov_b32 v{t+1}, s40")
    e(f"v_cndmask_b32 v{V_FLAG}, v{t}, v{t+1}, vcc")
    diag_masks(e)
    e(f"s_mov_b32 s43, {f32bits(1e-5):#x}")

    rt = {}

    def F(s, name):
        b = V_F + 20 * (s & 1)
        return b + {"x0": 0, "x1": 4, "w0": 8, "w1": 12, "w2": 16}[name]

    def read_ops(s):
        u, b = divmod(s, 2)
        sl = u % 5
        hi = 10 if sl >= 3 else 0
        off = (sl - (3 if hi else 0)) * SLOT

        def rx(a):
            def f():
                rt[(s, f"x{a}")] = e.ds(f"ds_read_b128 {vr(F(s,f'x{a}'),4)}, v{A+hi+2*a+b} offset:{off}")
            return f

        def rw(tl, half):
            def f():
                rt[(s, f"w{tl}")] = e.ds(f"ds_read_b64_tr_b16 {vr(F(s,f'w{tl}')+2*half,2)}, v{A+hi+4+3*b+tl} offset:{off+768*half}")
            return f
        return [rx(0), rw(0, 0), rw(0, 1), rx(1), rw(1, 0), rw(1, 1), rw(2, 0), rw(2, 1)]

    e.wait(vm=wtok[0])
    e("s_barrier")
    e.stamp(ST["a_bar"])
    for f in read_ops(0):
        f()
    issue_now(2)
    gotk = None
    for s in range(18):
        b = s & 1
        lds = []
        if b == 1 and s < 17:
            v = (s + 1) // 2
            e.wait(vm=wtok[v])
            e("s_barrier")
            if v + 2 < 9:
                lds = issue_ops(v + 2)
            elif gotk is None:
                gotk = go_load(e)
        nxt = read_ops(s + 1) if s < 17 else []
        f0 = s == 0
        ms = [(["x0"], mfma(V_SUM, V_ONES, F(s, "x0"), f0)),
              (["x0"], mfma(V_GRAM, F(s, "x0"), F(s, "x0"), f0))]
        for tl in range(3):
            w = F(s, f"w{tl}")
            ms.append(([f"w{tl}", "x0"], mfma(V_ACC + 4 * tl, w, F(s, "x0"), f0)))
            if b == 0:
                ms.append(([f"w{tl}"], mfma(V_CS + 4 * tl, w, V_ONES, f0)))
            ms.append(([f"w{tl}", "x1"], mfma(V_ACC + 12 + 4 * tl, w, F(s, "x1"), f0)))
        for i, (need, m) in enumerate(ms):
            e.wait(ds=max(rt[(s, n)] for n in need))
            e(m)
            if i < len(lds):
                lds[i]()
            if i < len(nxt):
                nxt[i]()
    e.stamp(ST["a_mm"])
    for tl in range(3):
        e.ds(f"ds_write_b128 v{V_E+1}, {vr(V_CS+4*tl,4)} offset:{1024*tl}")
    st = V_E + 6
    col_stats(e, st, QSCALE)
    e.ds(f"ds_write_b64 v{V_E+3}, {vr(st,2)} offset:3072")
    go_check(e, gotk, "q")
    e.wait(ds=e.ds_n)
    e("s_barrier")
    P = V_F
    tk = [e.ds(f"ds_read_b64 {vr(st+2,2)}, v{V_E+4} offset:3072")]
    for tl in range(3):
        tk.append(e.ds(f"ds_read_b128 {vr(P+4*tl,4)}, v{V_E+2} offset:{1024*tl}"))
    O = V_F + 16
    for tl in range(3):
        e.wait(ds=tk[tl + 1])
        for h in range(2):
            cs = V_CS + 4 * tl + 2 * h
            e(f"v_pk_add_f32 {vr(cs,2)}, {vr(cs,2)}, {vr(P+4*tl+2*h,2)}")
        for a in range(2):
            acc = V_ACC + 12 * a + 4 * tl
            for h in range(2):
                cs = V_CS + 4 * tl + 2 * h
                e(f"v_pk_fma_f32 {vr(acc+2*h,2)}, {vr(cs,2)}, {vr(st+2*a,2)}, {vr(acc+2*h,2)} op_sel_hi:[1,0,1] neg_lo:[1,0,0] neg_hi:[1,0,0]")
        for a in range(2):
            acc = V_ACC + 12 * a + 4 * tl
            for h in range(2):
                e(f"v_pk_mul_f32 {vr(acc+2*h,2)}, {vr(acc+2*h,2)}, {vr(st+2*a,2)} op_sel:[0,1] op_sel_hi:[1,1]")
        o = O + 4 * tl
        for h in range(2):
            for a in range(2):
                acc = V_ACC + 12 * a + 4 * tl + 2 * h
                e(f"v_cvt_pk_bf16_f32 v{o+2*a+h}, v{acc}, v{acc+1}")
        e(f"v_permlane16_swap_b32 v{o}, v{o+2}")
        e.nop(1)
        e(f"v_permlane16_swap_b32 v{o+1}, v{o+3}")
        e.vm(f"buffer_store_dwordx4 {vr(o,4)}, v{V_E+5}, {sr(SRD_WS,4)}, s14 offen offset:{256*tl} sc1")
    e("s_branch L_join")


def kv_role(e, ST):
    t = V_T
    A = V_AD
    e("s_sub_u32 s34, s34, 24")
    e("s_lshl_b32 s39, s33, 3")
    e("s_add_u32 s39, s39, s34")
    e("s_and_b32 s35, s32, 1")
    e("s_lshr_b32 s36, s32, 1")
    e(f"v_lshrrev_b32 v{t+4}, 3, v{V_L}")
    e(f"v_mul_u32_u24 v{t}, 1152, v{t+4}")
    e(f"v_and_b32 v{t+5}, 7, v{V_L}")
    e("s_lshl_b32 s37, s35, 2")
    e(f"v_add_u32 v{t+2}, s37, v{V_G}")
    e(f"v_xor_b32 v{t+1}, v{t+5}, v{t+2}")
    e(f"v_lshl_add_u32 v{V_LD}, v{t+1}, 4, v{t}")
    for j in range(3):
        for l in range(64):
            i = 64 * j + l
            assert (i * 171) >> 9 == i // 3
        e(f"v_add_u32 v{t}, {64*j}, v{V_L}")
        e(f"v_mul_u32_u24 v{t+1}, 171, v{t}")
        e(f"v_lshrrev_b32 v{t+1}, 9, v{t+1}")
        e(f"v_mul_u32_u24 v{t+2}, 3, v{t+1}")
        e(f"v_sub_u32 v{t+2}, v{t}, v{t+2}")
        e(f"v_mul_u32_u24 v{t+1}, 36, v{t+1}")
        e(f"v_lshl_add_u32 v{V_LD+1+j}, v{t+2}, 4, v{t+1}")
    e("s_lshl_b32 s38, s39, 2")
    e("s_add_u32 s38, s38, s32")
    e("s_mul_i32 s37, s38, 9216")
    e("s_lshl_b32 s12, s32, 10")
    e("s_mul_i32 s13, s35, 30720")
    e("s_mul_i32 s40, s36, 3072")
    e("s_add_u32 s13, s13, s40")
    e(f"s_add_u32 s13, s13, {L_KW}")
    e("s_mov_b32 s42, s34")
    e("s_lshl_b32 s50, s32, 6")
    e("s_add_u32 s50, s50, s39")
    e("s_min_u32 s51, s50, 161")
    e("s_mul_i32 s52, s51, 7282")
    e("s_lshr_b32 s52, s52, 16")
    e("s_mul_i32 s53, s52, 9")
    e("s_sub_u32 s53, s51, s53")
    e("s_lshr_b32 s54, s52, 1")
    e("s_and_b32 s55, s52, 1")
    e("s_mul_i32 s56, s54, 72")
    e("s_lshl_b32 s57, s55, 3")
    e("s_add_u32 s56, s56, s57")
    e("s_add_u32 s57, s55, 16")
    e("s_cmp_eq_u32 s54, 8")
    e("s_cselect_b32 s56, s57, s56")
    e("s_cselect_b32 s57, 72, 1")
    e("s_mul_i32 s57, s57, 1152")
    e("s_mul_i32 s56, s56, 1152")
    e("s_lshl_b32 s58, s53, 7")
    e("s_add_u32 s56, s56, s58")
    e(f"v_mul_u32_u24 v{t}, s57, v{t+4}")
    e(f"v_lshl_add_u32 v{V_LD+4}, v{t+5}, 4, v{t}")
    e("s_lshl_b32 s15, s32, 12")
    e(f"s_add_u32 s15, s15, {L_WO}")
    e("s_cmp_eq_u32 s39, 0")
    e(f"s_cselect_b32 s40, 0, {OOB}")
    e(f"v_lshl_add_u32 v{t+6}, v{V_L}, 4, s40")
    e("s_mul_i32 s41, s32, 3072")
    e(f"s_add_u32 s41, s41, {WS_FLAG}")
    for i in range(4):
        e(f"v_mov_b32 v{t+8+i}, 0")
    e("s_cmp_lt_u32 s50, 162")
    e(f"s_cselect_b32 s{SRD_WO+2}, {WQ_BYTES}, 0")
    e("s_waitcnt lgkmcnt(0)")
    common_srds(e)
    e("s_cmp_eq_u32 s35, 0")
    e(f"s_cselect_b32 s{SRD_W}, s8, s10")
    e(f"s_cselect_b32 s{SRD_W+1}, s9, s11")
    e(f"s_mov_b32 s{SRD_W+2}, {WK_BYTES}")
    for i in range(3):
        e.vm(f"buffer_store_dwordx4 {vr(t+8,4)}, v{t+6}, {sr(SRD_WS,4)}, s41 offen offset:{1024*i} sc1")
    tok = []

    def issue(i):
        e("s_add_u32 s43, s42, 1")
        e("s_cmp_eq_u32 s43, 9")
        e("s_cselect_b32 s43, 0, s43")
        e("s_cmp_eq_u32 s36, 0")
        e("s_cselect_b32 s40, s42, s43")
        e("s_mul_i32 s40, s40, 2304")
        for q in range(2):
            if 2 * i + q < 9:
                e(f"s_lshl_b32 s41, s{42+q}, 7")
                e(f"s_add_u32 m0, s12, {L_KX + 4096*(2*i+q)}")
                e("s_add_u32 s41, s41, s37")
                e.vm(f"buffer_load_dwordx4 v{V_LD}, {sr(SRD_X,4)}, s41 offen{NTX} lds")
        for j in range(3):
            e(f"s_add_u32 m0, s13, {6144*i + 1024*j}")
            e.nop(1)
            tk = e.vm(f"buffer_load_dwordx4 v{V_LD+1+j}, {sr(SRD_W,4)}, s40 offen lds")
        e("s_add_u32 s42, s43, 1")
        e("s_cmp_eq_u32 s42, 9")
        e("s_cselect_b32 s42, 0, s42")
        tok.append(tk)
    issue(0)
    for hl in range(4):
        e(f"s_add_u32 m0, s15, {1024*hl}")
        e(f"s_add_u32 s41, s56, {hl*18*1152}")
        wot = e.vm(f"buffer_load_dwordx4 v{V_LD+4}, {sr(SRD_WO,4)}, s41 offen{NTX} lds")
    e.stamp(ST["a_iss"])
    e(f"v_lshrrev_b32 v{t}, 1, v{V_C}")
    e(f"v_xor_b32 v{t}, v{t}, v{V_G}")
    e(f"v_lshlrev_b32 v{t}, 4, v{t}")
    e(f"v_lshl_add_u32 v{t}, v{V_C}, 7, v{t}")
    e("s_lshl_b32 s40, s36, 11")
    e(f"v_add_u32 v{A}, s40, v{t}")
    e(f"v_xor_b32 v{A+1}, 64, v{A}")
    e(f"v_lshrrev_b32 v{t+2}, 2, v{V_C}")
    e(f"v_lshl_add_u32 v{t}, v{V_G}, 3, v{t+2}")
    e(f"v_mul_u32_u24 v{t}, 48, v{t}")
    e(f"v_and_b32 v{t+1}, 3, v{V_C}")
    e(f"v_lshl_add_u32 v{t}, v{t+1}, 3, v{t}")
    e("s_mul_i32 s40, s35, 30720")
    e(f"s_add_u32 s40, s40, {L_KW}")
    e(f"v_add_u32 v{A+2}, s40, v{t}")
    e(f"v_and_b32 v{t}, 2, v{V_G}")
    e(f"v_lshrrev_b32 v{t+3}, 1, v{t+2}")
    e(f"v_add_u32 v{t}, v{t}, v{t+3}")
    e(f"v_lshlrev_b32 v{t}, 10, v{t}")
    e(f"v_and_b32 v{t+3}, 1, v{V_G}")
    e(f"v_lshl_add_u32 v{t}, v{t+3}, 9, v{t}")
    e(f"v_and_b32 v{t+3}, 1, v{t+2}")
    e(f"v_lshl_add_u32 v{t}, v{t+3}, 7, v{t}")
    e(f"v_add_u32 v{t}, s15, v{t}")
    e("s_cmp_eq_u32 s53, 8")
    e("s_cselect_b32 s40, 3, 4")
    e("s_cselect_b32 s41, 32, 8")
    e(f"v_lshl_add_u32 v{A+3}, v{t+1}, s40, v{t}")
    e(f"v_add_u32 v{A+4}, s41, v{A+3}")
    e("s_cselect_b32 s40, 4, 11")
    e("s_cselect_b32 s41, 8, 4")
    e(f"v_lshlrev_b32 v{t}, 6, v{V_G}")
    e(f"v_lshl_add_u32 v{t}, v{t+1}, s40, v{t}")
    e(f"v_lshl_add_u32 v{t}, v{t+2}, s41, v{t}")
    e(f"s_cselect_b32 s58, 9, 4")
    e(f"s_cselect_b32 s59, 144, 1")
    e("s_lshr_b32 s40, s53, 1")
    e("s_mul_i32 s40, s40, 9")
    e("s_cmp_eq_u32 s53, 8")
    e("s_cselect_b32 s40, 8, s40")
    e("s_mul_i32 s41, s54, 36")
    e("s_add_u32 s40, s40, s41")
    e("s_lshl_b32 s40, s40, 1")
    e("s_add_u32 s40, s40, s55")
    e("s_lshl_b32 s40, s40, 1")
    e("s_and_b32 s41, s53, 1")
    e("s_add_u32 s40, s40, s41")
    e("s_lshl_b32 s40, s40, 9")
    e(f"s_add_u32 s60, s40, {WS_WO}")
    e("s_lshl_b32 s58, s58, 11")
    e("s_lshl_b32 s59, s59, 8")
    e("s_add_u32 s61, s60, s58")
    e("s_add_u32 s62, s60, s59")
    e("s_add_u32 s63, s61, s59")
    e("s_cmp_lt_u32 s50, 162")
    e(f"s_cselect_b32 s40, 0, {OOB}")
    e(f"v_add_u32 v{A+5}, s40, v{t}")
    e("s_lshl_b32 s40, s39, 4")
    e(f"s_add_u32 s40, s40, {WS_FLAG}")
    e(f"v_cmp_gt_u32 vcc, 8, v{V_L}")
    e(f"v_mov_b32 v{t}, {OOB}")
    e(f"v_lshl_add_u32 v{t+1}, v{V_L}, 10, s40")
    e(f"v_cndmask_b32 v{V_FLAG}, v{t}, v{t+1}, vcc")
    e(f"v_or_b32 v{t+1}, s38, v{V_L}")
    e(f"v_cmp_eq_u32 vcc, 0, v{t+1}")
    e(f"v_mov_b32 v{t+7}, -1")
    e(f"v_lshlrev_b32 v{t+6}, 2, v{V_L}")
    e(f"v_cndmask_b32 v{A+6}, v{t}, v{t+1}, vcc")
    diag_masks(e)
    issue(1)
    e("s_lshl_b32 s40, s38, 8")
    e(f"s_add_u32 s40, s40, {WS_R}")
    e.vm(f"buffer_store_dword v{t+7}, v{t+6}, {sr(SRD_WS,4)}, s40 offen sc1")
    e.wait(vm=tok[0])
    e("s_barrier")
    e.stamp(ST["a_bar"])
    e.vm(f"buffer_store_dword v{V_ONES}, v{A+6}, {sr(SRD_DBG,4)}, 0 offen sc1")
    issue(2)
    e("s_lshl_b32 s38, s39, 1")
    e("s_add_u32 s38, s38, s36")
    e("s_cmp_eq_u32 s35, 1")
    e("s_cbranch_scc1 L_pa_v")
    st1 = e.fork()
    ntok = len(tok)
    for mat in range(2):
        if mat == 1:
            e.restore(st1)
            del tok[ntok:]
            e.label("L_pa_v")
        rt = {}

        def F(s, name):
            return V_F + 12 * (s & 1) + {"x": 0, "w0": 4, "w1": 8}[name]

        def read_ops(s):
            u, b = divmod(s, 2)

            def rx():
                rt[(s, "x")] = e.ds(f"ds_read_b128 {vr(F(s,'x'),4)}, v{A+b} offset:{L_KX + 4096*u}")

            def rw(nt, half):
                def f():
                    rt[(s, f"w{nt}")] = e.ds(f"ds_read_b64_tr_b16 {vr(F(s,f'w{nt}')+2*half,2)}, v{A+2} offset:{1536*s + 192*half + 32*nt}")
                return f
            return [rx, rw(0, 0), rw(0, 1), rw(1, 0), rw(1, 1)]
        for f in read_ops(0):
            f()
        for s in range(18):
            if s % 4 == 3 and s < 17:
                i = (s + 1) // 4
                e.wait(vm=tok[i])
                e("s_barrier")
                if i + 2 < 5:
                    issue(i + 2)
                if i == 2:
                    gotk = go_load(e)
                    for tl in range(4):
                        e.vm(f"buffer_store_dwordx4 {vr(V_WO+4*tl,4)}, v{A+5}, {sr(SRD_WS,4)}, s{60+tl} offen sc1")
            nxt = read_ops(s + 1) if s < 17 else []
            if s == 4:
                for tl in range(4):
                    for hh in range(2):
                        e.ds(f"ds_read_b64_tr_b16 {vr(V_WO+4*tl+2*hh,2)}, v{A+3+tl%2} offset:{64*(tl//2)+256*hh}")
            f0 = s == 0
            x = F(s, "x")
            sw = (lambda d, w, y: mfma(d, w, y, f0)) if mat == 0 else (lambda d, w, y: mfma(d, y, w, f0))
            ms = [(["x"], sw(V_SUM, V_ONES, x)), (["x"], mfma(V_GRAM, x, x, f0))]
            for nt in range(2):
                w = F(s, f"w{nt}")
                ms.append(([f"w{nt}"], sw(V_CS + 4 * nt, w, V_ONES)))
                ms.append(([f"w{nt}", "x"], sw(V_ACC + 4 * nt, w, x)))
            for i, (need, m) in enumerate(ms):
                e.wait(ds=max(rt[(s, n)] for n in need))
                e(m)
                if i < len(nxt):
                    nxt[i]()
        e.stamp(ST["a_mm"])
        e(f"s_mov_b32 s43, {f32bits(1e-5):#x}")
        a = V_ACC
        E = V_E
        if mat == 0:
            e(f"v_lshrrev_b32 v{E+2}, 1, v{V_G}")
            e(f"v_lshlrev_b32 v{E+2}, 9, v{E+2}")
            e(f"v_and_b32 v{E+3}, 1, v{V_G}")
            e(f"v_lshl_add_u32 v{E+2}, v{E+3}, 3, v{E+2}")
            e(f"v_lshl_add_u32 v{E+2}, v{V_C}, 4, v{E+2}")
            col_stats(e, E, 1.0)
            e("s_lshl_b32 s37, s39, 10")
            e("s_lshl_b32 s42, s36, 8")
            e("s_add_u32 s37, s37, s42")
            e(f"s_add_u32 s37, s37, {WS_K1}")
            e(f"v_lshlrev_b32 v{E+3}, 4, v{V_C}")
            e(f"v_lshl_add_u32 v{E+3}, v{V_G}, 9, v{E+3}")
            e(f"v_mov_b32 v{E+4}, {OOB}")
            e(f"v_cmp_gt_u32 vcc, 2, v{V_G}")
            e("s_lshr_b32 s41, s39, 2")
            e("s_lshl_b32 s41, s41, 10")
            e(f"v_cndmask_b32 v{E+3}, v{E+4}, v{E+3}, vcc")
            e("s_add_u32 s41, s41, s42")
            e("s_and_b32 s42, s39, 3")
            e("s_lshl_b32 s42, s42, 2")
            e("s_add_u32 s41, s41, s42")
            e(f"s_add_u32 s41, s41, {WS_K2}")
            e(f"v_cmp_eq_u32 vcc, 0, v{V_G}")
            for i in range(6):
                e(f"v_fma_f32 v{a+i}, -v{V_CS+i}, v{E}, v{a+i}")
            for i in range(6):
                e(f"v_mul_f32 v{a+i}, v{a+i}, v{E+1}")
            e(f"v_cvt_pk_bf16_f32 v{a}, v{a}, v{a+1}")
            e(f"v_cvt_pk_bf16_f32 v{a+1}, v{a+2}, v{a+3}")
            e(f"v_cvt_pk_bf16_f32 v{a+4}, v{a+4}, v{a+5}")
            e(f"v_mov_b32 v{E+4}, 0x3f80")
            e(f"v_cndmask_b32 v{a+4}, v{E+4}, v{a+4}, vcc")
            e.vm(f"buffer_store_dwordx2 {vr(a,2)}, v{E+2}, {sr(SRD_WS,4)}, s37 offen sc1")
            e.vm(f"buffer_store_dword v{a+4}, v{E+3}, {sr(SRD_WS,4)}, s41 offen sc1")
        else:
            e(f"v_lshlrev_b32 v{t}, 2, v{V_G}")
            e(f"v_sub_u32 v{t}, v{V_C}, v{t}")
            for r in range(4):
                e(f"v_cmp_eq_u32 s[{44+2*r}:{45+2*r}], {r}, v{t}")
            e(f"v_and_b32 v{E}, 3, v{V_C}")
            e(f"v_bfe_u32 v{E+1}, v{V_C}, 2, 1")
            for r in range(4):
                e(f"v_cndmask_b32 v{V_GRAM+r}, 0, v{V_GRAM+r}, s[{44+2*r}:{45+2*r}]")
            for sh in (8, 4, 2, 1):
                for r in range(4):
                    e(f"v_add_f32_dpp v{V_GRAM+r}, v{V_GRAM+r}, v{V_GRAM+r} row_ror:{sh} row_mask:0xf bank_mask:0xf")
            for r in range(4):
                e(f"v_mul_f32 v{V_SUM+r}, {f32bits(1.0/576):#x}, v{V_SUM+r}")
            for r in range(4):
                e(f"v_fma_f32 v{t+r}, -v{V_SUM+r}, v{V_SUM+r}, s43")
            for r in range(4):
                e(f"v_fmac_f32 v{t+r}, {f32bits(1.0/576):#x}, v{V_GRAM+r}")
            for r in range(4):
                e(f"v_max_f32 v{t+r}, s43, v{t+r}")
            for r in range(4):
                e(f"v_rsq_f32 v{V_GRAM+r}, v{t+r}")
            e(f"v_lshl_add_u32 v{E}, v{E+1}, 3, v{E}")
            e(f"v_bfe_u32 v{E+1}, v{V_C}, 3, 1")
            e(f"v_lshl_add_u32 v{E}, v{E+1}, 2, v{E}")
            e(f"v_lshrrev_b32 v{E+1}, 1, v{V_G}")
            e(f"v_mul_u32_u24 v{E+2}, 320, v{E+1}")
            e(f"v_and_b32 v{E+1}, 1, v{V_G}")
            e(f"v_lshl_add_u32 v{E+2}, v{E+1}, 3, v{E+2}")
            e(f"v_lshl_add_u32 v{E}, v{E}, 4, v{E+2}")
            e(f"v_and_b32 v{E+1}, 1, v{V_C}")
            e(f"v_lshl_add_u32 v{E+2}, v{E+1}, 5, v{E+2}")
            e(f"v_bfe_u32 v{E+1}, v{V_C}, 1, 1")
            e(f"v_lshl_add_u32 v{E+2}, v{E+1}, 4, v{E+2}")
            e(f"v_mov_b32 v{E+3}, {OOB}")
            e(f"v_cmp_gt_u32 vcc, 4, v{V_C}")
            e("s_mul_i32 s37, s38, 640")
            e(f"s_add_u32 s37, s37, {WS_V}")
            e(f"v_cndmask_b32 v{E+2}, v{E+3}, v{E+2}, vcc")
            e(f"v_cmp_lt_u32 vcc, 1, v{V_C}")
            for i in range(8):
                e(f"v_fma_f32 v{a+i}, -v{V_CS+i}, v{V_SUM+i%4}, v{a+i}")
            for i in range(8):
                e(f"v_mul_f32 v{a+i}, v{a+i}, v{V_GRAM+i%4}")
            e(f"v_cvt_pk_bf16_f32 v{a}, v{a}, v{a+1}")
            e(f"v_cvt_pk_bf16_f32 v{a+1}, v{a+2}, v{a+3}")
            e(f"v_cvt_pk_bf16_f32 v{a+4}, v{a+4}, v{a+5}")
            e(f"v_cvt_pk_bf16_f32 v{a+5}, v{a+6}, v{a+7}")
            e(f"v_cndmask_b32 v{a+4}, v{a+4}, v{V_ONES}, vcc")
            e(f"v_cndmask_b32 v{a+5}, v{a+5}, v{V_ONES}, vcc")
            e.vm(f"buffer_store_dwordx2 {vr(a,2)}, v{E}, {sr(SRD_WS,4)}, s37 offen sc1")
            e.vm(f"buffer_store_dwordx2 {vr(a+4,2)}, v{E+2}, {sr(SRD_WS,4)}, s37 offen offset:256 sc1")
        go_check(e, gotk, "kv"[mat])
        if mat == 0:
            e("s_branch L_join")


def phase_a(e, ST):
    e("s_cmp_ge_u32 s2, 256")
    e("s_cbranch_scc1 L_k2_end")
    e.stamp(0)
    e("s_load_dwordx8 s[4:11], s[0:1], 0")
    e(f"s_load_dwordx2 s[{SRD_WS}:{SRD_WS+1}], s[0:1], 96")
    e(f"s_load_dwordx2 s[{SRD_DBG}:{SRD_DBG+1}], s[0:1], 88")
    e(f"s_load_dwordx2 s[{SRD_WO}:{SRD_WO+1}], s[0:1], 32")
    e("s_getpc_b64 s[40:41]")
    e.label("L_pc0")
    e("s_bfe_u32 s42, s2, 0x30003")
    e("s_lshl_b32 s42, s42, 7")
    e(f"v_lshl_add_u32 v{V_T}, v0, 10, s42")
    e(f"v_cmp_gt_u32 vcc, L_k2_end-L_pc0, v{V_T}")
    e("s_and_saveexec_b64 s[42:43], vcc")
    e("s_cbranch_execz L_nopf0")
    e(f"global_load_dword v{V_PF}, v{V_T}, s[40:41]")
    e.label("L_nopf0")
    e("s_mov_b64 exec, -1")
    e(f"v_lshrrev_b32 v1, 6, v0")
    e(f"v_and_b32 v{V_L}, 63, v0")
    e(f"v_readfirstlane_b32 s32, v1")
    e(f"v_and_b32 v{V_C}, 15, v{V_L}")
    e(f"v_lshrrev_b32 v{V_G}, 4, v{V_L}")
    for (d, size) in ((SRD_WS, WS_BYTES), (SRD_X, X_BYTES), (SRD_DBG, 256)):
        e(f"s_mov_b32 s{d+2}, {size}")
        e(f"s_mov_b32 s{d+3}, 0x20000")
    e(f"s_mov_b32 s{SRD_W+3}, 0x20000")
    e(f"s_mov_b32 s{SRD_WO+3}, 0x20000")
    e("s_and_b32 s33, s2, 7")
    e("s_lshr_b32 s34, s2, 3")
    e("s_cmp_ge_u32 s34, 24")
    e("s_cbranch_scc1 L_pa_kv")
    st0 = e.fork()
    q_role(e, ST)
    e.restore(st0)
    e.label("L_pa_kv")
    kv_role(e, ST)
```

```python
import sys, os
sys.path.insert(0, os.path.dirname(os.path.abspath(__file__)))
import asmlib, k2

REF = "sequential_preLN__grouped_kv_mqa__moe_arch_mod__prompt.s.ref"
OUT = "sequential_preLN__grouped_kv_mqa__moe_arch_mod__prompt.s"

def build():
    head = [l for l in open(REF).read().split("\n") if l.startswith(";") and "@launch" not in l]
    code, desc = k2.gen()
    head.append(f"; @launch grid=(256,1,1) block=(256,1,1) lds={k2.LDS}")
    s = "\n".join(head) + '\n.amdgcn_target "amdgcn-amd-amdhsa--gfx950"\n.text\n' + code
    s += '.section .rodata,"a"\n.p2align 6\n' + desc
    return s

if __name__ == "__main__":
    if "--stamps" in sys.argv:
        asmlib.STAMPS[0] = True
        sys.argv.remove("--stamps")
    for a in list(sys.argv):
        if a.startswith("-D"):
            asmlib.OPT.add(a[2:]); sys.argv.remove(a)
    out = sys.argv[1] if len(sys.argv) > 1 else OUT
    open(out, "w").write(build())
    print("written", out)
```
